```python
import torch

def _softmax(x, axis=-1):
    return torch.softmax(x, dim=axis)
def _gelu(x):
    return torch.nn.functional.gelu(x, approximate="tanh")
def _silu(x):
    return torch.nn.functional.silu(x)
def _sigmoid(x):
    return torch.sigmoid(x)
def _layernorm(x, axis=-1, eps=1e-5):
    m = x.mean(dim=axis, keepdim=True)
    v = x.var(dim=axis, keepdim=True, unbiased=False)
    return (x - m) / torch.sqrt(v + eps)
def _scatter_add(tgt, idx, src, axis=0):
    return tgt.clone().index_add_(axis, idx, src)
def _segment_sum(src, seg, n):
    out = torch.zeros((n,) + src.shape[1:], dtype=src.dtype)
    return out.index_add_(0, seg, src)
def _pad(x, pw):
    flat = tuple(v for pair in reversed(pw) for v in pair)
    return torch.nn.functional.pad(x, flat)

kernel_name = 'parallel_sum__linear_attn_block__dense_activation_gelu__prompt'

def setup_inputs():

    _w = (lambda a: (lambda t: t.to(torch.bfloat16) if t.is_floating_point() else t)(torch.as_tensor(a)))
    def _A_setup():
        B, S, D = 1, 2048, 512
        return {
            "x": _w((lambda *s: torch.randn(*s, dtype=torch.bfloat16) * 0.05)(B, S, D)),
            "wqkv": _w((lambda *s: torch.randn(*s, dtype=torch.bfloat16) * 0.2)(D, 3 * D)),
            "wo": _w((lambda *s: torch.randn(*s, dtype=torch.bfloat16) * 0.05)(D, D)),
        }
    _A_in = _A_setup()

    def _B_setup():
        B, S, D, F = 1, 2048, 512, 1792
        return {
            "x": _w((lambda *s: torch.randn(*s, dtype=torch.bfloat16) * 0.05)(B, S, D)),
            "w1": _w((lambda *s: torch.randn(*s, dtype=torch.bfloat16) * 0.8)(D, F) * (D ** -0.5)),
            "b1": _w((lambda *s: torch.randn(*s, dtype=torch.bfloat16) * 12.8)(F) * 0.01),
            "w2": _w((lambda *s: torch.randn(*s, dtype=torch.bfloat16) * 0.8)(F, D) * (F ** -0.5)),
            "b2": _w((lambda *s: torch.randn(*s, dtype=torch.bfloat16) * 12.8)(D) * 0.01),
        }
    _B_in = _B_setup()

    return {
        "A_x": _A_in["x"],
        "A_wqkv": _A_in["wqkv"],
        "A_wo": _A_in["wo"],
        "B_x": _B_in["x"],
        "B_w1": _B_in["w1"],
        "B_b1": _B_in["b1"],
        "B_w2": _B_in["w2"],
        "B_b2": _B_in["b2"],
    }

def reference(A_x, A_wqkv, A_wo, B_x, B_w1, B_b1, B_w2, B_b2):
    def _A_ref(x, wqkv, wo):
        B, S, D = x.shape
        H = 32; Dh = D // H
        qkv = (lambda x, *d: x.permute(*d))((x @ wqkv).reshape(B, S, 3, H, Dh), 2, 0, 3, 1, 4)
        q, k, v = qkv[0], qkv[1], qkv[2]
        phi = lambda t: torch.where(t > 0, t + 1, torch.exp(t)) + 1e-6
        pq, pk = phi(q), phi(k)
        kv = torch.einsum("bhsd,bhse->bhde", pk, v)
        z = torch.einsum("bhsd->bhd", pk)
        num = torch.einsum("bhqd,bhde->bhqe", pq, kv)
        den = torch.einsum("bhqd,bhd->bhq", pq, z)[..., None] + 1e-6
        o = num / den
        return (lambda x, *d: x.permute(*d))(o, 0, 2, 1, 3).reshape(B, S, D) @ wo

    def _B_ref(x, w1, b1, w2, b2):
        h = torch.einsum("bsd,df->bsf", x, w1) + b1
        h = _gelu(h)
        return torch.einsum("bsf,fd->bsd", h, w2) + b2

    x = A_x
    xn = _layernorm(x, axis=-1)
    return x + _A_ref(xn, A_wqkv, A_wo) + _B_ref(xn, B_w1, B_b1, B_w2, B_b2)
```

```python
import struct
class A:
    def __init__(s):
        s.L=[]; s.vm=[]; s.lab=0
    def __call__(s, t): s.L.append("    "+t)
    def raw(s,t): s.L.append(t)
    def label(s,n): s.L.append(n+":")
    def newlabel(s,p="L"):
        s.lab+=1; return f".{p}{s.lab}"
    def vmem(s, t, name):
        s(t); s.vm.append(name)
    def vmN(s, names):
        idx=max(max(i for i,n in enumerate(s.vm) if n==x) for x in names)
        return len(s.vm)-1-idx
    def waitvm(s, names, extra=""):
        n=s.vmN(names); assert n<=63, n
        s(f"s_waitcnt vmcnt({n}){extra}")
    def text(s): return "\n".join(s.L)+"\n"
def v(i,n=1): return f"v{i}" if n==1 else f"v[{i}:{i+n-1}]"
def sg(i,n=1): return f"s{i}" if n==1 else f"s[{i}:{i+n-1}]"
def f32(x): return "0x%08x"%struct.unpack("<I",struct.pack("<f",x))[0]
def interleave(mf, fill):
    out=[]; n=len(mf); k=0
    for i,m in enumerate(mf):
        out.append(m)
        tgt=(len(fill)*(i+1))//n
        while k<tgt: out.append(fill[k]); k+=1
    return out
def srd(a, s0, ptr, nbytes, off=0):
    if off:
        a(f"s_add_u32 s{s0}, s{ptr}, {off}"); a(f"s_addc_u32 s{s0+1}, s{ptr+1}, 0")
        a(f"s_and_b32 s{s0+1}, s{s0+1}, 0xffff")
    else:
        a(f"s_mov_b32 s{s0}, s{ptr}"); a(f"s_and_b32 s{s0+1}, s{ptr+1}, 0xffff")
    a(f"s_mov_b32 s{s0+2}, {nbytes}"); a(f"s_mov_b32 s{s0+3}, 0x00020000")
def kdesc(name, vg, sgp=96):
    return f""".section .rodata,"a"
.p2align 6
.amdhsa_kernel {name}
  .amdhsa_next_free_vgpr {vg}
  .amdhsa_next_free_sgpr {sgp}
  .amdhsa_accum_offset {vg}
  .amdhsa_group_segment_fixed_size 0
  .amdhsa_kernarg_size 88
  .amdhsa_user_sgpr_count 2
  .amdhsa_user_sgpr_kernarg_segment_ptr 1
  .amdhsa_system_sgpr_workgroup_id_x 1
.end_amdhsa_kernel
"""
def khead(name):
    return f""".text
.globl {name}
.p2align 8
.type {name},@function
{name}:
"""
```

```python
from asmlib import *
from k2 import *
import math
STG=45056; WOFF=16384
AUX=3*STG
AUX_CS=AUX+4096; AUX_R=AUX_CS+1024
K1_LDS=AUX_R+1024
M16="v_mfma_f32_16x16x32_bf16"
K0=-2.0*math.sqrt(2.0/math.pi)*math.log2(math.e); K1c=K0*0.044715
LOG2E=math.log2(math.e)
VL=0; VXG=1; VWG=2
VXA=6
VWA=18
VCA=21
VSEL=24
VS1=28; VS2=29; VT=30
VB1=36
VCS=40
ACC=44
XF=108
WF=140
VE=220
def gen_path(a, typ, wc, opt):
    tag=f"{'AB'[typ]}{wc}"
    a.vm=[]
    nb = 3 if (typ==0 or wc==1) else 4
    st = " sc1" if opt.get("sc1",1) else ""
    a.label(f".Lk1_{tag}")
    if typ==1:
        mid=[("W",0),("x",0),("x",1)] if wc==0 else [("W",1),("W",2),("x",2)]
        end=[("W",3),("W",5)] if wc==0 else [("x",3),("W",4),("W",6)]
        nfirst=4
    else:
        mid=[("W",0),("x",0),("x",1)] if wc==0 else [("W",2),("W",4),("x",2),("x",3)]
        end=[("W",1),("W",3)] if wc==0 else [("W",5)]
        nfirst=len(mid)
    wg=[g for k,g in mid+end if k=="W"]
    if typ==1:
        for i,g in enumerate(wg):
            a(f"v_add_u32 v{VT}, s61, v{VL}")
            if g: a(f"v_add_u32 v{VT}, {256*g}, v{VT}")
            a(f"v_mul_u32_u24 v{VT+1}, 2341, v{VT}"); a(f"v_lshrrev_b32 v{VT+1}, 16, v{VT+1}")
            a(f"v_mul_u32_u24 v{VT+2}, 28, v{VT+1}"); a(f"v_sub_u32 v{VT}, v{VT}, v{VT+2}")
            a(f"v_mul_u32_u24 v{VT+1}, 3584, v{VT+1}"); a(f"v_lshl_add_u32 v{VWG+i}, v{VT}, 4, v{VT+1}")
        a("s_mul_i32 s64, s59, 448")
        srd(a,32,12,512*3584)
        wstage=64*3584
    else:
        a(f"v_lshrrev_b32 v{VT}, 3, v{VL}"); a(f"s_lshr_b32 s64, s61, 3"); a(f"v_add_u32 v{VT}, s64, v{VT}")
        a(f"v_mul_u32_u24 v{VT}, 3072, v{VT}")
        a(f"v_and_b32 v{VT+1}, 7, v{VL}"); a(f"v_lshrrev_b32 v{VT+2}, 2, v{VL}"); a(f"v_and_b32 v{VT+2}, 4, v{VT+2}"); a(f"v_xor_b32 v{VT+1}, v{VT+1}, v{VT+2}")
        a(f"v_lshl_add_u32 v{VWG}, v{VT+1}, 4, v{VT}")
        a("s_lshl_b32 s64, s59, 7")
        srd(a,32,6,512*3072)
        wstage=64*3072
    segcol=[1024,2048,0]
    def dma(t,k,g):
        base=(t%3)*STG
        if k=="x":
            a(f"s_add_u32 m0, s62, {base+g*4096}")
            a(f"s_add_u32 s65, s63, {g*32768+t*128}")
            a.vmem(f"buffer_load_dwordx4 v{VXG}, s[28:31], s65 offen lds", f"{t}{k}{g}")
        elif typ==1:
            a(f"s_add_u32 m0, s62, {base+WOFF+g*4096}")
            a(f"s_add_u32 s65, s64, {t*wstage}")
            a.vmem(f"buffer_load_dwordx4 v{VWG+wg.index(g)}, s[32:35], s65 offen lds", f"{t}{k}{g}")
        else:
            a(f"s_add_u32 m0, s62, {base+WOFF+g*4096}")
            a(f"s_add_u32 s65, s64, {t*wstage+(g&1)*32*3072+segcol[g>>1]}")
            a.vmem(f"buffer_load_dwordx4 v{VWG}, s[32:35], s65 offen lds", f"{t}{k}{g}")
    for t in range(3):
        for k,g in mid+end: dma(t,k,g)
        if t==0 and typ==1:
            srd(a,36,14,3584)
            a(f"v_and_b32 v{VT}, 31, v{VL}"); a(f"v_lshlrev_b32 v{VT}, 1, v{VT}")
            for b in range(nb):
                a.vmem(f"buffer_load_ushort v{VB1+b}, v{VT}, s[36:39], s64 offen offset:{(wc*4+b)*64}","b1")
    a(f"v_and_b32 v{VT}, 31, v{VL}"); a(f"v_bfe_u32 v{VT+1}, v{VL}, 1, 3"); a(f"v_lshrrev_b32 v{VT+2}, 5, v{VL}"); a(f"v_xor_b32 v{VT+1}, v{VT+1}, v{VT+2}")
    a(f"v_lshlrev_b32 v{VT}, 7, v{VT}"); a(f"v_lshl_add_u32 v{VT}, v{VT+1}, 4, v{VT}"); a("s_lshl_b32 s65, s61, 6"); a(f"v_add_u32 v{VXA}, s65, v{VT}")
    for s_ in range(3):
        for k in range(4):
            if s_==0 and k==0: continue
            if k==0: a(f"v_add_u32 v{VXA+s_*4}, {s_*STG}, v{VXA}")
            else: a(f"v_xor_b32 v{VXA+s_*4+k}, {k*32}, v{VXA+s_*4}")
    pitch = 448 if typ else 128
    a(f"v_lshrrev_b32 v{VT}, 5, v{VL}"); a(f"v_lshlrev_b32 v{VT}, 3, v{VT}"); a(f"v_bfe_u32 v{VT+1}, v{VL}, 2, 2"); a(f"v_add_u32 v{VT}, v{VT}, v{VT+1}")
    a(f"v_mul_u32_u24 v{VT}, {pitch}, v{VT}")
    a(f"v_bfe_u32 v{VT+1}, v{VL}, 4, 1"); a(f"v_lshl_add_u32 v{VT}, v{VT+1}, 5, v{VT}")
    a(f"v_and_b32 v{VT+1}, 3, v{VL}"); a(f"v_lshl_add_u32 v{VT}, v{VT+1}, 3, v{VT}")
    if typ==0:
        a(f"v_bfe_u32 v{VT+1}, v{VL}, 3, 1")
        if wc: a(f"v_xor_b32 v{VT+1}, 1, v{VT+1}")
        a(f"v_lshl_add_u32 v{VT}, v{VT+1}, 6, v{VT}")
    bstride = 64 if typ else 8192
    boff = (wc*4*64) if typ else 0
    a(f"s_min_u32 s66, s60, {nb-1}")
    a(f"s_mul_i32 s65, s66, {bstride}")
    for s_ in range(3):
        a(f"v_add_u32 v{VWA+s_}, {s_*STG+WOFF+boff}, v{VT}"); a(f"v_add_u32 v{VCA+s_}, s65, v{VWA+s_}")
    a(f"v_lshrrev_b32 v{VT}, 4, v{VL}"); a(f"v_xor_b32 v{VT}, v{VT}, v{VL}"); a(f"v_and_b32 v{VT}, 1, v{VT}")
    a(f"v_cmp_eq_u32 vcc, 0, v{VT}"); a(f"v_mov_b32 v{VT}, 0x3f803f80"); a("s_nop 0")
    for i in range(4): a(f"v_cndmask_b32 v{VSEL+i}, 0, v{VT}, vcc")
    a(f"v_mov_b32 v{VS1}, 0"); a(f"v_mov_b32 v{VS2}, 0")
    def wf(h,kk,b): return WF+(h&1)*40+kk*20+b*4
    def xf(t,k): return XF+(t&1)*16+k*4
    def reads(h):
        t=h>>1; s_=t%3; R=[]
        if not h&1:
            for k in range(4): R.append(f"ds_read_b128 {v(xf(t,k),4)}, v{VXA+s_*4+k}")
        for kk in range(2):
            k=(h&1)*2+kk
            for b in range(nb+1):
                for z in range(2):
                    base = VWA if b<nb else VCA
                    off = k*16*pitch + z*4*pitch + (b*bstride if b<nb else 0)
                    R.append(f"ds_read_b64_tr_b16 {v(wf(h,kk,b if b<nb else 4)+2*z,2)}, v{base+s_} offset:{off}")
        return R
    def need(h):
        t=h>>1; L=(mid+end)
        L=L[:nfirst] if not h&1 else L
        return [f"{t}{k}{g}" for k,g in L]
    def swapped(b): return typ==0 and b<2
    a.waitvm(need(0)); a("s_barrier")
    for r in reads(0): a(r)
    for h in range(16):
        t=h>>1
        if h<15: a.waitvm(need(h+1)," lgkmcnt(0)")
        else: a("s_waitcnt lgkmcnt(0)")
        if h<15: a("s_barrier")
        if t+3<8:
            for k,g in (end if h&1 else mid): dma(t+3,k,g)
        mf=[]
        for kk in range(2):
            k=(h&1)*2+kk
            for b in range(nb):
                acc=v(ACC+b*16,16); W=v(wf(h,kk,b),4); X=v(xf(t,k),4)
                c = acc if (h or kk) else "0"
                mf.append(f"{MF} {acc}, {X}, {W}, {c}" if swapped(b) else f"{MF} {acc}, {W}, {X}, {c}")
            mf.append(f"{M16} {v(VCS,4)}, {v(wf(h,kk,4),4)}, {v(VSEL,4)}, {v(VCS,4) if (h or kk) else 0}")
        fill = reads(h+1) if h<15 else []
        sf=[]; X=xf(t,(h&1)*2+wc)
        for d in range(4):
            t0,t1=VT+(d&1)*2,VT+(d&1)*2+1
            sf+= [f"v_lshlrev_b32 v{t0}, 16, v{X+d}", f"v_and_b32 v{t1}, 0xffff0000, v{X+d}",
                  f"v_add_f32 v{VS1}, v{VS1}, v{t0}", f"v_fmac_f32 v{VS2}, v{t0}, v{t0}",
                  f"v_add_f32 v{VS1}, v{VS1}, v{t1}", f"v_fmac_f32 v{VS2}, v{t1}, v{t1}"]
        F=[]; n=max(len(fill),len(sf)); i=j=0
        for q in range(n):
            while i<(len(fill)*(q+1))//n: F.append(fill[i]); i+=1
            while j<(len(sf)*(q+1))//n: F.append(sf[j]); j+=1
        for x in interleave(mf,F): a(x)
    a(f"v_and_b32 v{VT}, 31, v{VL}"); a(f"s_lshr_b32 s65, s61, 1"); a(f"v_add_u32 v{VT}, s65, v{VT}"); a(f"v_lshlrev_b32 v{VT}, 3, v{VT}")
    a(f"v_add_u32 v{VT}, {AUX}, v{VT}")
    a(f"v_lshrrev_b32 v{VT+1}, 5, v{VL}"); a(f"v_lshl_add_u32 v{VT+1}, v{VT+1}, 10, v{VT}")
    a(f"ds_write_b64 v{VT+1}, v[{VS1}:{VS2}] offset:{wc*2048}")
    a(f"v_and_b32 v{VT+2}, 1, v{VL}"); a(f"v_lshlrev_b32 v{VT+2}, 6, v{VT+2}"); a(f"v_lshrrev_b32 v{VT+3}, 4, v{VL}"); a(f"v_lshl_add_u32 v{VT+2}, v{VT+3}, 4, v{VT+2}")
    a(f"s_lshl_b32 s65, s66, 7"); a(f"s_add_u32 s65, s65, {AUX_CS+wc*512}"); a(f"v_add_u32 v{VT+2}, s65, v{VT+2}")
    a("s_nop 4")
    a(f"ds_write_b128 v{VT+2}, {v(VCS,4)}")
    a("s_waitcnt lgkmcnt(0)"); a("s_barrier")
    E=VE
    for i in range(4): a(f"ds_read_b64 {v(E+2*i,2)}, v{VT} offset:{i*1024}")
    a(f"v_and_b32 v{VT+1}, 31, v{VL}"); a(f"v_lshlrev_b32 v{VT+1}, 2, v{VT+1}"); a(f"v_add_u32 v{VT+2}, {AUX_CS+wc*512}, v{VT+1}")
    for b in range(nb): a(f"ds_read_b32 v{E+8+b}, v{VT+2} offset:{b*128}")
    a(f"s_waitcnt lgkmcnt({nb})")
    a(f"v_add_f32 v{E}, v{E}, v{E+2}"); a(f"v_add_f32 v{E+4}, v{E+4}, v{E+6}"); a(f"v_add_f32 v{E+1}, v{E+1}, v{E+3}"); a(f"v_add_f32 v{E+5}, v{E+5}, v{E+7}")
    a(f"v_add_f32 v{E}, v{E}, v{E+4}"); a(f"v_add_f32 v{E+1}, v{E+1}, v{E+5}")
    NM,VAR,RS,SD=E,E+1,E+2,E+3
    a(f"v_mul_f32 v{NM}, {f32(-1/512)}, v{E}")
    a(f"v_mul_f32 v{VAR}, {f32(1/512)}, v{E+1}")
    a(f"v_fma_f32 v{VAR}, -v{NM}, v{NM}, v{VAR}"); a(f"v_max_f32 v{VAR}, 0, v{VAR}"); a(f"v_add_f32 v{VAR}, {f32(1e-5)}, v{VAR}")
    a(f"v_rsq_f32 v{RS}, v{VAR}"); a(f"v_sqrt_f32 v{SD}, v{VAR}")
    XE=XF
    def split(dst,src,t):
        a(f"v_cvt_pk_bf16_f32 v{t}, v{src}, v{src}"); a(f"v_and_b32 v{t}, 0xffff0000, v{t}"); a(f"v_sub_f32 v{t+1}, v{src}, v{t}")
        a(f"v_cvt_pk_bf16_f32 v{dst}, v{t}, v{t+1}")
    split(XE,NM,E+4); a(f"v_mov_b32 v{XE+1}, v{XE}"); split(XE+2,SD,E+4); a(f"v_mov_b32 v{XE+3}, 0")
    if typ==0:
        a(f"s_lshl_b32 s65, s3, 7"); a(f"s_add_u32 s65, s65, {AUX_R}"); a(f"v_add_u32 v{VT+1}, s65, v{VT+1}")
        a(f"ds_write_b32 v{VT+1}, v{RS}")
        a(f"v_lshrrev_b32 v{VT+2}, 5, v{VL}"); a(f"v_lshlrev_b32 v{VT+2}, 4, v{VT+2}"); a(f"v_add_u32 v{VT+2}, s65, v{VT+2}")
        a("s_waitcnt lgkmcnt(0)")
        RR=XF+16
        for q in range(4): a(f"ds_read_b128 {v(RR+4*q,4)}, v{VT+2} offset:{q*32}")
    else:
        a("s_waitcnt lgkmcnt(0)"); a.waitvm(["b1"])
    a(f"v_cmp_gt_u32 vcc, 32, v{VL}")
    for b in range(nb):
        W=WF+b*4; c=E+8+b
        a(f"v_cvt_pk_bf16_f32 v{W}, v{c}, v{c}"); a(f"v_and_b32 v{E+4}, 0xffff0000, v{W}"); a(f"v_sub_f32 v{E+4}, v{c}, v{E+4}")
        a(f"v_cvt_pk_bf16_f32 v{W+1}, v{E+4}, v{E+4}")
        a(f"v_cndmask_b32 v{W}, 0, v{W}, vcc"); a(f"v_cndmask_b32 v{W+1}, 0, v{W+1}, vcc")
        if typ:
            a(f"v_lshl_or_b32 v{W+2}, v{VB1+b}, 16, v{VB1+b}"); a(f"v_cndmask_b32 v{W+2}, 0, v{W+2}, vcc")
        else: a(f"v_mov_b32 v{W+2}, 0")
        a(f"v_mov_b32 v{W+3}, 0")
    a("s_nop 1")
    for b in range(nb):
        acc=v(ACC+b*16,16); W=v(WF+b*4,4); X=v(XE,4)
        a(f"{MF} {acc}, {X}, {W}, {acc}" if swapped(b) else f"{MF} {acc}, {W}, {X}, {acc}")
    a(f"v_lshlrev_b32 v{VT}, 4, v{VL}")
    a("s_lshl_b32 s65, s58, 2"); a("s_add_u32 s65, s65, s60"); a("s_mul_i32 s65, s65, 144")
    srd(a,36,24,A2_BYTES,WS_A2)
    P=WF+16
    if typ==1:
        a("s_mul_i32 s67, s59, 14"); a("s_add_u32 s65, s65, s67"); a(f"s_add_u32 s65, s65, {wc*8}"); a("s_lshl_b32 s65, s65, 10")
        C0,C1,S2=E+4,E+6,E+8
        a(f"v_mul_f32 v{C0}, {f32(K0)}, v{RS}"); a(f"v_mul_f32 v{C1}, v{RS}, v{RS}"); a(f"v_mul_f32 v{C1}, v{C1}, v{RS}"); a(f"v_mul_f32 v{C1}, {f32(K1c)}, v{C1}")
        a(f"v_mov_b32 v{C0+1}, v{C0}"); a(f"v_mov_b32 v{C1+1}, v{C1}"); a(f"v_mov_b32 v{S2}, v{SD}"); a(f"v_mov_b32 v{S2+1}, v{SD}")
        a("s_nop 7")
        T=E+10
        for b in range(nb):
            for hh in range(2):
                r0=ACC+b*16+hh*8; Tt=T+((b*2+hh)&1)*8; Pp=P+((b*2+hh)&3)*4
                for i in range(0,8,2): a(f"v_pk_mul_f32 {v(Tt+i,2)}, {v(r0+i,2)}, {v(r0+i,2)}")
                for i in range(0,8,2): a(f"v_pk_fma_f32 {v(Tt+i,2)}, {v(Tt+i,2)}, {v(C1,2)}, {v(C0,2)}")
                for i in range(0,8,2): a(f"v_pk_mul_f32 {v(Tt+i,2)}, {v(Tt+i,2)}, {v(r0+i,2)}")
                for i in range(8): a(f"v_exp_f32 v{Tt+i}, v{Tt+i}")
                for i in range(0,8,2): a(f"v_pk_fma_f32 {v(Tt+i,2)}, {v(Tt+i,2)}, {v(S2,2)}, {v(S2,2)}")
                for i in range(8): a(f"v_rcp_f32 v{Tt+i}, v{Tt+i}")
                for i in range(0,8,2): a(f"v_pk_mul_f32 {v(Tt+i,2)}, {v(Tt+i,2)}, {v(r0+i,2)}")
                for i in range(4): a(f"v_cvt_pk_bf16_f32 v{Pp+i}, v{Tt+2*i}, v{Tt+2*i+1}")
                ks=b*2+hh
                if ks==4: a("s_add_u32 s65, s65, 4096")
                a(f"buffer_store_dwordx4 {v(Pp,4)}, v{VT}, s[36:39], s65 offen offset:{(ks&3)*1024}{st}")
    else:
        a("s_lshl_b32 s67, s59, 2"); a("s_add_u32 s65, s65, s67"); a(f"s_add_u32 s65, s65, {112+wc*2}"); a("s_lshl_b32 s65, s65, 10")
        EPS,L2=E+4,E+5
        a(f"v_mov_b32 v{EPS}, {f32(1e-6)}"); a(f"v_mul_f32 v{L2}, {f32(LOG2E)}, v{RS}")
        a("s_waitcnt lgkmcnt(0)"); a("s_nop 7")
        T=E+10
        PK=P; PV=P+8; VA=P+16; VB=P+24
        for hh in range(2):
            r0=ACC+hh*8
            for i in range(8): a(f"v_fma_f32 v{r0+i}, v{r0+i}, v{RR+hh*8+i}, v{EPS}")
            for i in range(8): a(f"v_mul_f32 v{T+i}, {f32(LOG2E)}, v{r0+i}")
            for i in range(8): a(f"v_exp_f32 v{T+i}, v{T+i} clamp")
            for i in range(8): a(f"v_max_f32 v{r0+i}, v{r0+i}, v{EPS}")
            for i in range(8): a(f"v_add_f32 v{r0+i}, v{r0+i}, v{T+i}")
            for i in range(4): a(f"v_cvt_pk_bf16_f32 v{PK+hh*4+i}, v{r0+2*i}, v{r0+2*i+1}")
        for i in range(16): a(f"v_mul_f32 v{ACC+16+i}, v{ACC+16+i}, v{RR+i}")
        for i in range(8): a(f"v_cvt_pk_bf16_f32 v{PV+i}, v{ACC+16+2*i}, v{ACC+17+2*i}")
        a(f"v_and_b32 v{T}, 16, v{VL}"); a(f"v_cmp_eq_u32 vcc, 0, v{T}"); a(f"v_mov_b32 v{T}, 0x3f803f80"); a("s_nop 0")
        for i in range(8):
            a(f"v_cndmask_b32 v{VA+i}, v{T}, v{PV+i}, vcc"); a(f"v_cndmask_b32 v{VB+i}, v{PV+i}, v{T}, vcc")
        a("s_nop 1")
        DA,DB=ACC,ACC+16
        a(f"{MF} {v(DA,16)}, {v(PK,4)}, {v(VA,4)}, 0"); a(f"{MF} {v(DB,16)}, {v(PK,4)}, {v(VB,4)}, 0")
        a(f"{MF} {v(DA,16)}, {v(PK+4,4)}, {v(VA+4,4)}, {v(DA,16)}"); a(f"{MF} {v(DB,16)}, {v(PK+4,4)}, {v(VB+4,4)}, {v(DB,16)}")
        PQ=P+32
        for hh in range(2):
            r0=ACC+32+hh*8
            for i in range(8): a(f"v_mul_f32 v{T+i}, v{L2}, v{r0+i}")
            for i in range(8): a(f"v_fma_f32 v{r0+i}, v{r0+i}, v{RS}, v{EPS}")
            for i in range(8): a(f"v_exp_f32 v{T+i}, v{T+i} clamp")
            for i in range(8): a(f"v_max_f32 v{r0+i}, v{r0+i}, v{EPS}")
            for i in range(8): a(f"v_add_f32 v{r0+i}, v{r0+i}, v{T+i}")
            for i in range(4): a(f"v_cvt_pk_bf16_f32 v{PQ+hh*4+i}, v{r0+2*i}, v{r0+2*i+1}")
            a(f"buffer_store_dwordx4 {v(PQ+hh*4,4)}, v{VT}, s[36:39], s65 offen offset:{hh*1024}{st}")
        a("s_lshl_b32 s65, s3, 12"); a(f"v_add_u32 v{VT+1}, s65, v{VT}")
        for q in range(4):
            src = DA+q*4 if q<2 else DB+q*4
            a(f"ds_write_b128 v{VT+1}, {v(src,4)} offset:{q*1024}")
        a("s_lshl_b32 s65, s60, 10"); a(f"v_add_u32 v{VT+1}, s65, v{VT}")
        a("s_waitcnt lgkmcnt(0)"); a("s_barrier")
        for w in range(4): a(f"ds_read_b128 {v(T+w*4,4)}, v{VT+1} offset:{(wc*4+w)*4096}")
        srd(a,40,24,KVP_BYTES,WS_KVP)
        a("s_lshl_b32 s65, s59, 2"); a("s_lshr_b32 s67, s60, 1"); a("s_add_u32 s65, s65, s67"); a(f"s_add_u32 s65, s65, {wc*2}"); a("s_lshl_b32 s65, s65, 15")
        a("s_lshl_b32 s67, s58, 11"); a("s_add_u32 s65, s65, s67"); a("s_and_b32 s67, s60, 1"); a("s_lshl_b32 s67, s67, 10"); a("s_add_u32 s65, s65, s67")
        a("s_waitcnt lgkmcnt(0)")
        for i in range(4):
            a(f"v_add_f32 v{T+i}, v{T+i}, v{T+4+i}"); a(f"v_add_f32 v{T+8+i}, v{T+8+i}, v{T+12+i}")
        for i in range(4): a(f"v_add_f32 v{T+i}, v{T+i}, v{T+8+i}")
        a(f"buffer_store_dwordx4 {v(T,4)}, v{VT}, s[40:43], s65 offen{st}")
    if wc==1:
        a("s_cmp_lg_u32 s3, 7"); a("s_cbranch_scc1 .Lk1_end")
        srd(a,44,24,KVZ_BYTES,WS_KVZ)
        a("s_lshl_b32 s65, s2, 7"); a(f"v_lshlrev_b32 v{VT+1}, 2, v{VL}"); a(f"v_mov_b32 v{VT+2}, -1")
        a("s_mov_b32 exec_hi, 0")
        a(f"buffer_store_dword v{VT+2}, v{VT+1}, s[44:47], s65 offen")
    a("s_endpgm")
def gen_k1(name,opt):
    a=A(); a.raw(khead(name))
    a("s_cmp_ge_u32 s2, 256"); a("s_cbranch_scc1 .Lk1_end")
    load_args(a)
    a("v_lshrrev_b32 v1, 6, v0"); a("v_and_b32 v0, 63, v0"); a("v_readfirstlane_b32 s3, v1")
    a("s_and_b32 s56, s2, 7"); a("s_lshr_b32 s57, s2, 3")
    a("s_and_b32 s58, s56, 1"); a("s_lshl_b32 s58, s58, 3"); a("s_and_b32 s59, s57, 7"); a("s_add_u32 s58, s58, s59")
    a("s_lshr_b32 s56, s56, 1"); a("s_lshl_b32 s56, s56, 2"); a("s_lshr_b32 s57, s57, 3"); a("s_add_u32 s56, s56, s57")
    a("s_and_b32 s57, s56, 1"); a("s_lshr_b32 s59, s56, 1")
    a("s_and_b32 s60, s3, 3"); a("s_lshl_b32 s61, s60, 6"); a("s_lshl_b32 s62, s60, 10"); a("s_lshl_b32 s63, s58, 17")
    a(f"v_lshrrev_b32 v{VT}, 3, v0"); a("s_lshl_b32 s64, s60, 3"); a(f"v_add_u32 v{VT}, s64, v{VT}")
    a(f"v_bfe_u32 v{VT+1}, v{VT}, 1, 3"); a(f"v_and_b32 v{VT+2}, 7, v0"); a(f"v_xor_b32 v{VT+1}, v{VT+1}, v{VT+2}")
    a(f"v_lshlrev_b32 v{VT}, 10, v{VT}"); a(f"v_lshl_add_u32 v{VXG}, v{VT+1}, 4, v{VT}")
    a("s_waitcnt lgkmcnt(0)")
    srd(a,28,4,2048*1024)
    a("s_lshr_b32 s64, s3, 2"); a("s_lshl_b32 s65, s57, 1"); a("s_add_u32 s64, s64, s65")
    a("s_cmp_eq_u32 s64, 1"); a("s_cbranch_scc1 .Lk1_A1")
    a("s_cmp_eq_u32 s64, 2"); a("s_cbranch_scc1 .Lk1_B0")
    a("s_cmp_eq_u32 s64, 3"); a("s_cbranch_scc1 .Lk1_B1")
    for typ in range(2):
        for wc in range(2): gen_path(a,typ,wc,opt)
    a.label(".Lk1_end"); a("s_endpgm")
    return a.text()+kdesc(name,256)
```

```python
from asmlib import *
WS_A2=0; A2_BYTES=64*144*1024
WS_KVP=0x900000; KVP_BYTES=32*16*2048
WS_KVZ=0xA00000; KVZ_BYTES=32*1024
MF="v_mfma_f32_32x32x16_bf16"
def load_args(a):
    a("s_load_dwordx16 s[4:19], s[0:1], 0")
    a("s_load_dwordx4 s[20:23], s[0:1], 64")
    a("s_load_dwordx2 s[24:25], s[0:1], 80")
def gen_k2(name, opt):
    a=A(); a.raw(khead(name))
    a("s_cmp_ge_u32 s2, 256"); a("s_cbranch_scc1 .Lk2_end")
    load_args(a)
    a("v_lshrrev_b32 v7, 6, v0"); a("v_and_b32 v0, 63, v0")
    a("v_readfirstlane_b32 s3, v7")
    a("s_and_b32 s60, s2, 7"); a("s_lshr_b32 s61, s2, 3")
    a("s_lshl_b32 s60, s60, 2"); a("s_lshr_b32 s62, s61, 3"); a("s_add_u32 s60, s60, s62")
    a("s_and_b32 s61, s61, 7")
    a("v_lshlrev_b32 v1, 4, v0"); a("v_add_u32 v2, 0x24000, v1")
    a("v_lshrrev_b32 v3, 3, v0"); a("v_lshlrev_b32 v3, 10, v3")
    a("v_and_b32 v4, 7, v0"); a("v_lshrrev_b32 v5, 2, v0"); a("v_and_b32 v5, 4, v5"); a("v_xor_b32 v4, v4, v5")
    a("v_lshl_add_u32 v3, v4, 4, v3")
    a("v_lshrrev_b32 v4, 5, v0"); a("v_lshlrev_b32 v4, 9, v4")
    a("v_bfe_u32 v5, v0, 2, 2"); a("v_lshl_add_u32 v4, v5, 7, v4")
    a("v_bfe_u32 v5, v0, 3, 1"); a("v_lshl_add_u32 v4, v5, 6, v4")
    a("v_bfe_u32 v5, v0, 4, 1"); a("v_lshl_add_u32 v4, v5, 5, v4")
    a("v_and_b32 v5, 3, v0"); a("v_lshl_add_u32 v4, v5, 3, v4")
    a("s_mul_i32 s62, s3, 20480")
    a("v_add_u32 v4, s62, v4"); a("v_xor_b32 v5, 64, v4")
    a("v_lshrrev_b32 v6, 3, v0"); a("v_lshlrev_b32 v6, 10, v6"); a("v_and_b32 v7, 7, v0"); a("v_lshlrev_b32 v7, 4, v7")
    a("v_add_u32 v6, v6, v7")
    a("s_lshl_b32 s63, s60, 16"); a("s_lshl_b32 s64, s3, 13"); a("s_add_u32 s63, s63, s64")
    a("s_lshl_b32 s64, s61, 7"); a("s_add_u32 s63, s63, s64")
    a("s_waitcnt lgkmcnt(0)")
    srd(a,28,24,A2_BYTES,WS_A2); srd(a,32,16,1792*1024); srd(a,36,8,512*1024)
    srd(a,52,24,KVP_BYTES,WS_KVP); srd(a,56,24,KVZ_BYTES,WS_KVZ)
    a("s_cmp_lg_u32 s3, 0"); a("s_cbranch_scc1 .Lk2_nored0")
    a("v_and_b32 v16, 3, v0"); a("v_lshlrev_b32 v16, 11, v16"); a("v_lshrrev_b32 v17, 2, v0"); a("v_lshl_add_u32 v16, v17, 4, v16")
    a("s_lshr_b32 s65, s2, 3"); a("s_lshl_b32 s65, s65, 15"); a("s_and_b32 s66, s2, 7"); a("s_lshl_b32 s66, s66, 8"); a("s_add_u32 s65, s65, s66")
    for i in range(4):
        a(f"buffer_load_dwordx4 {v(240+4*i,4)}, v16, s[52:55], s65 offen")
        if i<3: a("s_add_u32 s65, s65, 8192")
    a.label(".Lk2_nored0")
    a("s_mul_i32 s66, s60, 288"); a("s_mul_i32 s67, s3, 14"); a("s_add_u32 s67, s67, s66"); a("s_lshl_b32 s67, s67, 10")
    a("s_lshl_b32 s68, s3, 2"); a("s_add_u32 s68, s68, s66"); a("s_add_u32 s68, s68, 112"); a("s_lshl_b32 s68, s68, 10")
    a("s_mul_i32 s69, s3, 229376"); a("s_add_u32 s69, s69, s64")
    a("s_lshl_b32 s70, s3, 16"); a("s_add_u32 s70, s70, s64")
    RING=10
    def dmaB(ks):
        for p in range(2):
            a(f"s_add_u32 m0, s62, {(ks%RING)*2048+p*1024}")
            if ks<14:
                a(f"s_add_u32 s71, s69, {(ks*16+p*8)*1024}")
                a.vmem(f"buffer_load_dwordx4 v3, s[32:35], s71 offen lds", f"B{ks}")
            else:
                a(f"s_add_u32 s71, s70, {((ks-14)*16+p*8)*1024}")
                a.vmem(f"buffer_load_dwordx4 v3, s[36:39], s71 offen lds", f"B{ks}")
    def ldA(ks):
        if ks<14:
            if ks%4==0: a(f"s_add_u32 s72, s67, {ks*1024}")
            so,off="s72",(ks%4)*1024
        else: so,off="s68",(ks-14)*1024
        for r in range(2):
            a.vmem(f"buffer_load_dwordx4 {v(96+ks*8+r*4,4)}, v{1+r}, s[28:31], {so} offen offset:{off}", f"A{ks}")
    for ks in range(18):
        if ks<RING: dmaB(ks)
        ldA(ks)
    srd(a,40,4,2048*1024); srd(a,44,20,2048*1024); srd(a,48,18,1024)
    a.vmem("buffer_load_dwordx4 v[8:11], v6, s[40:43], s63 offen","X")
    a.vmem("buffer_load_dwordx4 v[12:15], v7, s[48:51], s64 offen","X")
    a("s_cmp_lg_u32 s3, 0"); a("s_cbranch_scc1 .Lk2_nored1")
    a(f"s_waitcnt vmcnt({len(a.vm)})")
    for i in range(4):
        a(f"v_add_f32 v{240+i}, v{240+i}, v{244+i}"); a(f"v_add_f32 v{248+i}, v{248+i}, v{252+i}")
    for i in range(4): a(f"v_add_f32 v{240+i}, v{240+i}, v{248+i}")
    a("s_nop 1")
    for i in range(4): a(f"v_add_f32_dpp v{244+i}, v{240+i}, v{240+i} quad_perm:[1,0,3,2] row_mask:0xf bank_mask:0xf")
    a("s_nop 1")
    for i in range(4): a(f"v_add_f32_dpp v{240+i}, v{244+i}, v{244+i} quad_perm:[2,3,0,1] row_mask:0xf bank_mask:0xf")
    a("v_cvt_pk_bf16_f32 v244, v240, v241"); a("v_cvt_pk_bf16_f32 v245, v242, v243")
    a("v_lshrrev_b32 v16, 2, v0"); a("v_lshlrev_b32 v16, 4, v16")
    a("s_lshr_b32 s65, s2, 3"); a("s_lshl_b32 s65, s65, 10"); a("s_and_b32 s66, s2, 3"); a("s_lshl_b32 s66, s66, 8"); a("s_add_u32 s65, s65, s66")
    a("s_bfe_u32 s66, s2, 0x10002"); a("s_lshl_b32 s66, s66, 3"); a("s_add_u32 s65, s65, s66")
    a("s_mov_b32 exec_lo, 0x11111111"); a("s_mov_b32 exec_hi, 0x11111111")
    a("buffer_store_dwordx2 v[244:245], v16, s[56:59], s65 offen sc1")
    a("s_mov_b64 exec, -1")
    a.label(".Lk2_nored1")
    a("s_lshl_b32 s73, s3, 12")
    def rdB(ks):
        for c in range(2):
            for h in range(2):
                a(f"ds_read_b64_tr_b16 {v(16+(ks&1)*8+c*4+h*2,2)}, v{4+c} offset:{(ks%RING)*2048+h*1024}")
    def ldKVZ(track=True):
        for i in range(4):
            t=f"buffer_load_dwordx4 {v(240+4*i,4)}, v1, s[56:59], s73 offen offset:{i*1024} sc1"
            if track: a.vmem(t,"KVZ")
            else: a(t)
    def chkKVZ():
        a("v_max3_u32 v96, v240, v241, v242")
        for i in range(3,15,2): a(f"v_max3_u32 v96, v96, v{240+i}, v{241+i}")
        a("v_max_u32 v96, v96, v255")
        a("v_cmp_eq_u32 vcc, -1, v96"); a("s_nop 1")
    a.waitvm(["B0"]); rdB(0)
    for ks in range(18):
        if ks==13:
            a.waitvm(["KVZ"]); chkKVZ()
            a("s_cbranch_vccz .Lk2_kvok")
            a("s_mov_b32 s76, 0x40000")
            a.label(".Lk2_kvloop")
            a("s_sleep 2"); ldKVZ(False); a("s_waitcnt vmcnt(0)"); chkKVZ()
            a("s_cbranch_vccz .Lk2_kvok")
            a("s_sub_u32 s76, s76, 1"); a("s_cmp_lg_u32 s76, 0"); a("s_cbranch_scc1 .Lk2_kvloop")
            a.label(".Lk2_kvok")
        need=[f"A{ks}"]+([f"B{ks+1}"] if ks<17 else [])
        if ks in (13,15): need+= [f"A{ks+1}",f"A{ks+2}"]
        a.waitvm(need)
        if ks<17: rdB(ks+1)
        if ks in (13,15):
            for hh in range(2):
                for r in range(2):
                    k2=ks+1+hh
                    a(f"{MF} {v(96+(hh*2+r)*16,16)}, {v(240+(k2-14)*4,4)}, {v(96+k2*8+r*4,4)}, 0")
        a(f"s_waitcnt lgkmcnt({4 if ks<17 else 0})")
        for c in range(2):
            for r in range(2):
                acc=v(32+(c*2+r)*16,16)
                a(f"{MF} {acc}, {v(16+(ks&1)*8+c*4,4)}, {v(96+ks*8+r*4,4)}, {acc if ks else 0}")
        if ks in (13,15):
            for hh in range(2):
                for r in range(2):
                    D=96+(hh*2+r)*16; num=D+(8 if hh else 0); den=D+(0 if hh else 8)
                    a(f"v_add_f32 v{den}, {f32(1e-6)}, v{den}"); a(f"v_rcp_f32 v{den}, v{den}")
            for hh in range(2):
                for r in range(2):
                    k2=ks+1+hh
                    D=96+(hh*2+r)*16; num=D+(8 if hh else 0); den=D+(0 if hh else 8)
                    for i in range(8): a(f"v_mul_f32 v{num+i}, v{num+i}, v{den}")
                    for i in range(4): a(f"v_cvt_pk_bf16_f32 v{96+k2*8+r*4+i}, v{num+2*i}, v{num+2*i+1}")
            a("s_nop 1")
        if ks+RING<18: dmaB(ks+RING)
        if ks==8: ldKVZ()
    a("s_mul_i32 s62, s3, 17408"); a("v_add_u32 v16, s62, v1")
    a("v_bfe_u32 v17, v0, 2, 1"); a("v_lshlrev_b32 v17, 3, v17"); a("v_and_b32 v18, 3, v0"); a("v_add_u32 v17, v17, v18")
    a("s_lshr_b32 s65, s3, 2"); a("s_lshl_b32 s65, s65, 2"); a("v_add_u32 v17, s65, v17"); a("v_mul_u32_u24 v17, 1088, v17")
    a("s_and_b32 s65, s3, 3"); a("s_lshl_b32 s65, s65, 7"); a("v_lshrrev_b32 v18, 3, v0"); a("v_lshl_add_u32 v17, v18, 4, v17"); a("v_add_u32 v17, s65, v17")
    a("v_add_u32 v18, 69632, v17")
    a("s_nop 7")
    a("s_barrier")
    for q in range(16): a(f"ds_write_b128 v16, {v(32+q*4,4)} offset:{q*1088}")
    a("s_waitcnt lgkmcnt(0)"); a("s_barrier")
    for w in range(8):
        for h in range(2):
            a(f"ds_read_b128 {v(96+w*8+h*4,4)}, v{17+(w>>2)} offset:{(w&3)*17408+h*512}")
    a.waitvm(["X"])
    for i in range(4):
        a(f"v_lshlrev_b32 v{32+2*i}, 16, v{8+i}"); a(f"v_and_b32 v{33+2*i}, 0xffff0000, v{8+i}")
        a(f"v_lshlrev_b32 v{40+2*i}, 16, v{12+i}"); a(f"v_and_b32 v{41+2*i}, 0xffff0000, v{12+i}")
    for i in range(8): a(f"v_add_f32 v{32+i}, v{32+i}, v{40+i}")
    for w in range(8):
        a(f"s_waitcnt lgkmcnt({14-2*w})")
        for i in range(8): a(f"v_add_f32 v{32+i}, v{32+i}, v{96+w*8+i}")
    for i in range(4): a(f"v_cvt_pk_bf16_f32 v{40+i}, v{32+2*i}, v{33+2*i}")
    a("buffer_store_dwordx4 v[40:43], v6, s[44:47], s63 offen")
    a.label(".Lk2_end"); a("s_endpgm")
    return a.text()+kdesc(name,256)
```

```python
import sys
from p1 import *
from k2 import *
opt={}
out="parallel_sum__linear_attn_block__dense_activation_gelu__prompt.s"
for x in sys.argv[1:]:
    k,val=x.split("=")
    if k=="out": out=val
    else: opt[k]=int(val)
hdr=f"""; linear-attn + gelu MLP block, two launches
; @launch kernel=p1_kernel grid=(256,1,1) block=(512,1,1) lds=163840
; @launch kernel=p2_kernel grid=(256,1,1) block=(512,1,1) lds=163840
.amdgcn_target "amdgcn-amd-amdhsa--gfx950"
"""
open(out,"w").write(hdr+gen_p1("p1_kernel",opt)+gen_k2("p2_kernel",opt))
```

```python
import struct
class A:
    def __init__(s):
        s.L=[]; s.vm=[]; s.lab=0
    def __call__(s, t): s.L.append("    "+t)
    def raw(s,t): s.L.append(t)
    def label(s,n): s.L.append(n+":")
    def newlabel(s,p="L"):
        s.lab+=1; return f".{p}{s.lab}"
    def vmem(s, t, name):
        s(t); s.vm.append(name)
    def vmN(s, names):
        idx=max(max(i for i,n in enumerate(s.vm) if n==x) for x in names)
        return len(s.vm)-1-idx
    def waitvm(s, names, extra=""):
        n=s.vmN(names); assert n<=63, n
        s(f"s_waitcnt vmcnt({n}){extra}")
    def text(s): return "\n".join(s.L)+"\n"
def v(i,n=1): return f"v{i}" if n==1 else f"v[{i}:{i+n-1}]"
def sg(i,n=1): return f"s{i}" if n==1 else f"s[{i}:{i+n-1}]"
def f32(x): return "0x%08x"%struct.unpack("<I",struct.pack("<f",x))[0]
def interleave(mf, fill):
    out=[]; n=len(mf); k=0
    for i,m in enumerate(mf):
        out.append(m)
        tgt=(len(fill)*(i+1))//n
        while k<tgt: out.append(fill[k]); k+=1
    return out
def srd(a, s0, ptr, nbytes, off=0):
    if off:
        a(f"s_add_u32 s{s0}, s{ptr}, {off}"); a(f"s_addc_u32 s{s0+1}, s{ptr+1}, 0")
        a(f"s_and_b32 s{s0+1}, s{s0+1}, 0xffff")
    else:
        a(f"s_mov_b32 s{s0}, s{ptr}"); a(f"s_and_b32 s{s0+1}, s{ptr+1}, 0xffff")
    a(f"s_mov_b32 s{s0+2}, {nbytes}"); a(f"s_mov_b32 s{s0+3}, 0x00020000")
def kdesc(name, vg, sgp=102):
    return f""".section .rodata,"a"
.p2align 6
.amdhsa_kernel {name}
  .amdhsa_next_free_vgpr {vg}
  .amdhsa_next_free_sgpr {sgp}
  .amdhsa_accum_offset {vg}
  .amdhsa_group_segment_fixed_size 0
  .amdhsa_kernarg_size 88
  .amdhsa_user_sgpr_count 2
  .amdhsa_user_sgpr_kernarg_segment_ptr 1
  .amdhsa_system_sgpr_workgroup_id_x 1
.end_amdhsa_kernel
"""
def khead(name):
    return f""".text
.globl {name}
.p2align 8
.type {name},@function
{name}:
"""

TS_BASE=16<<20
class TS:
    def __init__(s,a,on,kid): s.a=a; s.on=on; s.n=0; s.kid=kid
    def start(s):
        if s.on: s.a("s_memrealtime s[78:79]"); s.a("s_memtime s[80:81]"); s.n=2
    def __call__(s):
        if s.on and s.n<11:
            s.a(f"s_memtime s[{78+2*s.n}:{79+2*s.n}]"); s.n+=1
    def reset(s,n): s.n=n
    def flush(s,vt):
        if not s.on: return
        a=s.a
        a("s_waitcnt vmcnt(0)")
        a(f"s_memtime s[{78+2*s.n}:{79+2*s.n}]"); n=s.n+1
        a("s_mov_b64 exec, 1")
        srd(a,72,24,4<<20,TS_BASE)
        a("s_lshl_b32 s76, s2, 3"); a("s_add_u32 s76, s76, s3"); a("s_lshl_b32 s76, s76, 7"); a(f"s_add_u32 s76, s76, {s.kid<<20}")
        a("s_waitcnt lgkmcnt(0)")
        a(f"v_mov_b32 v{vt+2}, 0")
        for i in range(n):
            a(f"v_mov_b32 v{vt}, s{78+2*i}"); a(f"v_mov_b32 v{vt+1}, s{79+2*i}")
            a(f"buffer_store_dwordx2 v[{vt}:{vt+1}], v{vt+2}, s[72:75], s76 offen offset:{i*8}"); a("s_nop 1")
        a("s_mov_b64 exec, -1")
```

```python
from asmlib import *
from k2 import *
import math
STG=45056; WOFF=16384
AUX=3*STG
AUX_CS=AUX+4096; AUX_R=AUX_CS+1024
K1_LDS=AUX_R+1024
M16="v_mfma_f32_16x16x32_bf16"
K0=-2.0*math.sqrt(2.0/math.pi)*math.log2(math.e); K1c=K0*0.044715
LOG2E=math.log2(math.e)
VL=0; VXG=1; VWG=2
VXA=6
VWA=18
VCA=21
VSEL=24
VS1=28; VS2=29; VT=30
VB1=36
VCS=40
ACC=44
XF=108
WF=140
VE=220
def gen_path(a, typ, wc, opt, ts):
    ts.reset(2)
    tag=f"{'AB'[typ]}{wc}"
    a.vm=[]
    nb = 3 if (typ==0 or wc==1) else 4
    st = " sc1" if opt.get("sc1",1) else ""
    a.label(f".Lk1_{tag}")
    if typ==1:
        mid=[("W",0),("x",0),("x",1)] if wc==0 else [("W",1),("W",2),("x",2)]
        end=[("W",3),("W",5)] if wc==0 else [("x",3),("W",4),("W",6)]
        nfirst=4
    else:
        mid=[("W",0),("x",0),("x",1)] if wc==0 else [("W",2),("W",4),("x",2),("x",3)]
        end=[("W",1),("W",3)] if wc==0 else [("W",5)]
        nfirst=len(mid)
    wg=[g for k,g in mid+end if k=="W"]
    if typ==1:
        for i,g in enumerate(wg):
            a(f"v_add_u32 v{VT}, s61, v{VL}")
            if g: a(f"v_add_u32 v{VT}, {256*g}, v{VT}")
            a(f"v_mul_u32_u24 v{VT+1}, 2341, v{VT}"); a(f"v_lshrrev_b32 v{VT+1}, 16, v{VT+1}")
            a(f"v_mul_u32_u24 v{VT+2}, 28, v{VT+1}"); a(f"v_sub_u32 v{VT}, v{VT}, v{VT+2}")
            a(f"v_mul_u32_u24 v{VT+1}, 3584, v{VT+1}"); a(f"v_lshl_add_u32 v{VWG+i}, v{VT}, 4, v{VT+1}")
        a("s_mul_i32 s64, s59, 448")
        srd(a,32,12,512*3584)
        wstage=64*3584
    else:
        a(f"v_lshrrev_b32 v{VT}, 3, v{VL}"); a(f"s_lshr_b32 s64, s61, 3"); a(f"v_add_u32 v{VT}, s64, v{VT}")
        a(f"v_mul_u32_u24 v{VT}, 3072, v{VT}")
        a(f"v_and_b32 v{VT+1}, 7, v{VL}"); a(f"v_lshrrev_b32 v{VT+2}, 2, v{VL}"); a(f"v_and_b32 v{VT+2}, 4, v{VT+2}"); a(f"v_xor_b32 v{VT+1}, v{VT+1}, v{VT+2}")
        a(f"v_lshl_add_u32 v{VWG}, v{VT+1}, 4, v{VT}")
        a("s_lshl_b32 s64, s59, 7")
        srd(a,32,6,512*3072)
        wstage=64*3072
    segcol=[1024,2048,0]
    def dma(t,k,g):
        base=(t%3)*STG
        if (k,g)==mid[0]:
            a(f"s_add_u32 s68, s71, {t}"); a("s_and_b32 s68, s68, 7"); a("s_lshl_b32 s69, s68, 7"); a("s_add_u32 s69, s69, s63")
            a(f"s_mul_i32 s70, s68, {wstage}"); a("s_add_u32 s70, s70, s64")
        if k=="x":
            a(f"s_add_u32 m0, s62, {base+g*4096}")
            a(f"s_add_u32 s65, s69, {g*32768}")
            a.vmem(f"buffer_load_dwordx4 v{VXG}, s[28:31], s65 offen lds", f"{t}{k}{g}")
        elif typ==1:
            a(f"s_add_u32 m0, s62, {base+WOFF+g*4096}")
            a(f"s_mov_b32 s65, s70")
            a.vmem(f"buffer_load_dwordx4 v{VWG+wg.index(g)}, s[32:35], s65 offen lds", f"{t}{k}{g}")
        else:
            a(f"s_add_u32 m0, s62, {base+WOFF+g*4096}")
            a(f"s_add_u32 s65, s70, {(g&1)*32*3072+segcol[g>>1]}")
            a.vmem(f"buffer_load_dwordx4 v{VWG}, s[32:35], s65 offen lds", f"{t}{k}{g}")
    for t in range(3):
        for k,g in mid+end: dma(t,k,g)
        if t==0 and typ==1:
            srd(a,36,14,3584)
            a(f"v_and_b32 v{VT}, 31, v{VL}"); a(f"v_lshlrev_b32 v{VT}, 1, v{VT}")
            for b in range(nb):
                a.vmem(f"buffer_load_ushort v{VB1+b}, v{VT}, s[36:39], s64 offen offset:{(wc*4+b)*64}","b1")
    ts()
    a(f"v_and_b32 v{VT}, 31, v{VL}"); a(f"v_bfe_u32 v{VT+1}, v{VL}, 1, 3"); a(f"v_lshrrev_b32 v{VT+2}, 5, v{VL}"); a(f"v_xor_b32 v{VT+1}, v{VT+1}, v{VT+2}")
    a(f"v_lshlrev_b32 v{VT}, 7, v{VT}"); a(f"v_lshl_add_u32 v{VT}, v{VT+1}, 4, v{VT}"); a("s_lshl_b32 s65, s61, 6"); a(f"v_add_u32 v{VXA}, s65, v{VT}")
    for s_ in range(3):
        for k in range(4):
            if s_==0 and k==0: continue
            if k==0: a(f"v_add_u32 v{VXA+s_*4}, {s_*STG}, v{VXA}")
            else: a(f"v_xor_b32 v{VXA+s_*4+k}, {k*32}, v{VXA+s_*4}")
    pitch = 448 if typ else 128
    a(f"v_lshrrev_b32 v{VT}, 5, v{VL}"); a(f"v_lshlrev_b32 v{VT}, 3, v{VT}"); a(f"v_bfe_u32 v{VT+1}, v{VL}, 2, 2"); a(f"v_add_u32 v{VT}, v{VT}, v{VT+1}")
    a(f"v_mul_u32_u24 v{VT}, {pitch}, v{VT}")
    a(f"v_bfe_u32 v{VT+1}, v{VL}, 4, 1"); a(f"v_lshl_add_u32 v{VT}, v{VT+1}, 5, v{VT}")
    a(f"v_and_b32 v{VT+1}, 3, v{VL}"); a(f"v_lshl_add_u32 v{VT}, v{VT+1}, 3, v{VT}")
    if typ==0:
        a(f"v_bfe_u32 v{VT+1}, v{VL}, 3, 1")
        if wc: a(f"v_xor_b32 v{VT+1}, 1, v{VT+1}")
        a(f"v_lshl_add_u32 v{VT}, v{VT+1}, 6, v{VT}")
    bstride = 64 if typ else 8192
    boff = (wc*4*64) if typ else 0
    a(f"s_min_u32 s66, s60, {nb-1}")
    a(f"s_mul_i32 s65, s66, {bstride}")
    for s_ in range(3):
        a(f"v_add_u32 v{VWA+s_}, {s_*STG+WOFF+boff}, v{VT}"); a(f"v_add_u32 v{VCA+s_}, s65, v{VWA+s_}")
    a(f"v_lshrrev_b32 v{VT}, 4, v{VL}"); a(f"v_xor_b32 v{VT}, v{VT}, v{VL}"); a(f"v_and_b32 v{VT}, 1, v{VT}")
    a(f"v_cmp_eq_u32 vcc, 0, v{VT}"); a(f"v_mov_b32 v{VT}, 0x3f803f80"); a("s_nop 0")
    for i in range(4): a(f"v_cndmask_b32 v{VSEL+i}, 0, v{VT}, vcc")
    a(f"v_mov_b32 v{VS1}, 0"); a(f"v_mov_b32 v{VS2}, 0")
    def wf(h,kk,b): return WF+(h&1)*40+kk*20+b*4
    def xf(t,k): return XF+(t&1)*16+k*4
    def reads(h):
        t=h>>1; s_=t%3; R=[]
        if not h&1:
            for k in range(4): R.append(f"ds_read_b128 {v(xf(t,k),4)}, v{VXA+s_*4+k}")
        for kk in range(2):
            k=(h&1)*2+kk
            for b in range(nb+1):
                for z in range(2):
                    base = VWA if b<nb else VCA
                    off = k*16*pitch + z*4*pitch + (b*bstride if b<nb else 0)
                    R.append(f"ds_read_b64_tr_b16 {v(wf(h,kk,b if b<nb else 4)+2*z,2)}, v{base+s_} offset:{off}")
        return R
    def need(h):
        t=h>>1; L=(mid+end)
        L=L[:nfirst] if not h&1 else L
        return [f"{t}{k}{g}" for k,g in L]
    def swapped(b): return typ==0 and b<2
    a.waitvm(need(0)); a("s_barrier"); ts()
    for r in reads(0): a(r)
    for h in range(16):
        t=h>>1
        if h<15: a.waitvm(need(h+1)," lgkmcnt(0)")
        else: a("s_waitcnt lgkmcnt(0)")
        if h<15: a("s_barrier")
        if h in (3,7,11,15): ts()
        if t+3<8:
            for k,g in (end if h&1 else mid): dma(t+3,k,g)
        if h==opt.get("pfh",10) and opt.get("pf",1):
            srd(a,40,16,1792*1024); srd(a,44,8,512*1024); srd(a,36,24,A2_BYTES,WS_A2)
            a("s_lshr_b32 s65, s2, 3"); a("s_lshl_b32 s65, s65, 3"); a("s_add_u32 s65, s65, s3")
            a("s_mul_i32 s67, s65, 7168"); a("s_lshl_b32 s65, s65, 11")
            a(f"v_min_u32 v{VE}, 55, v{VL}"); a(f"v_lshlrev_b32 v{VE}, 7, v{VE}"); a(f"v_and_b32 v{VE+1}, 15, v{VL}"); a(f"v_lshlrev_b32 v{VE+1}, 7, v{VE+1}")
            a.vmem(f"buffer_load_dword v{VE+30}, v{VE}, s[40:43], s67 offen","pf")
            a.vmem(f"buffer_load_dword v{VE+31}, v{VE+1}, s[44:47], s65 offen","pf")
            a("s_lshl_b32 s65, s58, 2"); a("s_add_u32 s65, s65, s60"); a("s_mul_i32 s65, s65, 147456")
            a.vmem(f"buffer_load_dword v{VE+32}, v{VE+1}, s[36:39], s65 offen","pf")
        mf=[]
        for kk in range(2):
            k=(h&1)*2+kk
            for b in range(nb):
                acc=v(ACC+b*16,16); W=v(wf(h,kk,b),4); X=v(xf(t,k),4)
                c = acc if (h or kk) else "0"
                mf.append(f"{MF} {acc}, {X}, {W}, {c}" if swapped(b) else f"{MF} {acc}, {W}, {X}, {c}")
            mf.append(f"{M16} {v(VCS,4)}, {v(wf(h,kk,4),4)}, {v(VSEL,4)}, {v(VCS,4) if (h or kk) else 0}")
        fill = reads(h+1) if h<15 else []
        sf=[]; X=xf(t,(h&1)*2+wc)
        for d in range(4):
            t0,t1=VT+(d&1)*2,VT+(d&1)*2+1
            sf+= [f"v_lshlrev_b32 v{t0}, 16, v{X+d}", f"v_and_b32 v{t1}, 0xffff0000, v{X+d}",
                  f"v_add_f32 v{VS1}, v{VS1}, v{t0}", f"v_fmac_f32 v{VS2}, v{t0}, v{t0}",
                  f"v_add_f32 v{VS1}, v{VS1}, v{t1}", f"v_fmac_f32 v{VS2}, v{t1}, v{t1}"]
        F=[]; n=max(len(fill),len(sf)); i=j=0
        for q in range(n):
            while i<(len(fill)*(q+1))//n: F.append(fill[i]); i+=1
            while j<(len(sf)*(q+1))//n: F.append(sf[j]); j+=1
        for x in interleave(mf,F): a(x)
    a(f"v_and_b32 v{VT}, 31, v{VL}"); a(f"s_lshr_b32 s65, s61, 1"); a(f"v_add_u32 v{VT}, s65, v{VT}"); a(f"v_lshlrev_b32 v{VT}, 3, v{VT}")
    a(f"v_add_u32 v{VT}, {AUX}, v{VT}")
    a(f"v_lshrrev_b32 v{VT+1}, 5, v{VL}"); a(f"v_lshl_add_u32 v{VT+1}, v{VT+1}, 10, v{VT}")
    a(f"ds_write_b64 v{VT+1}, v[{VS1}:{VS2}] offset:{wc*2048}")
    a(f"v_and_b32 v{VT+2}, 1, v{VL}"); a(f"v_lshlrev_b32 v{VT+2}, 6, v{VT+2}"); a(f"v_lshrrev_b32 v{VT+3}, 4, v{VL}"); a(f"v_lshl_add_u32 v{VT+2}, v{VT+3}, 4, v{VT+2}")
    a(f"s_lshl_b32 s65, s66, 7"); a(f"s_add_u32 s65, s65, {AUX_CS+wc*512}"); a(f"v_add_u32 v{VT+2}, s65, v{VT+2}")
    a("s_nop 4")
    a(f"ds_write_b128 v{VT+2}, {v(VCS,4)}")
    a("s_waitcnt lgkmcnt(0)"); a("s_barrier")
    E=VE; ts()
    for i in range(4): a(f"ds_read_b64 {v(E+2*i,2)}, v{VT} offset:{i*1024}")
    a(f"v_and_b32 v{VT+1}, 31, v{VL}"); a(f"v_lshlrev_b32 v{VT+1}, 2, v{VT+1}"); a(f"v_add_u32 v{VT+2}, {AUX_CS+wc*512}, v{VT+1}")
    for b in range(nb): a(f"ds_read_b32 v{E+8+b}, v{VT+2} offset:{b*128}")
    a(f"s_waitcnt lgkmcnt({nb})")
    a(f"v_add_f32 v{E}, v{E}, v{E+2}"); a(f"v_add_f32 v{E+4}, v{E+4}, v{E+6}"); a(f"v_add_f32 v{E+1}, v{E+1}, v{E+3}"); a(f"v_add_f32 v{E+5}, v{E+5}, v{E+7}")
    a(f"v_add_f32 v{E}, v{E}, v{E+4}"); a(f"v_add_f32 v{E+1}, v{E+1}, v{E+5}")
    NM,VAR,RS,SD=E,E+1,E+2,E+3
    a(f"v_mul_f32 v{NM}, {f32(-1/512)}, v{E}")
    a(f"v_mul_f32 v{VAR}, {f32(1/512)}, v{E+1}")
    a(f"v_fma_f32 v{VAR}, -v{NM}, v{NM}, v{VAR}"); a(f"v_max_f32 v{VAR}, 0, v{VAR}"); a(f"v_add_f32 v{VAR}, {f32(1e-5)}, v{VAR}")
    a(f"v_rsq_f32 v{RS}, v{VAR}"); a(f"v_sqrt_f32 v{SD}, v{VAR}")
    XE=XF
    def split(dst,src,t):
        a(f"v_cvt_pk_bf16_f32 v{t}, v{src}, v{src}"); a(f"v_and_b32 v{t}, 0xffff0000, v{t}"); a(f"v_sub_f32 v{t+1}, v{src}, v{t}")
        a(f"v_cvt_pk_bf16_f32 v{dst}, v{t}, v{t+1}")
    split(XE,NM,E+4); a(f"v_mov_b32 v{XE+1}, v{XE}"); split(XE+2,SD,E+4); a(f"v_mov_b32 v{XE+3}, 0")
    if typ==0:
        a(f"s_lshl_b32 s65, s3, 7"); a(f"s_add_u32 s65, s65, {AUX_R}"); a(f"v_add_u32 v{VT+1}, s65, v{VT+1}")
        a(f"ds_write_b32 v{VT+1}, v{RS}")
        a(f"v_lshrrev_b32 v{VT+2}, 5, v{VL}"); a(f"v_lshlrev_b32 v{VT+2}, 4, v{VT+2}"); a(f"v_add_u32 v{VT+2}, s65, v{VT+2}")
        a("s_waitcnt lgkmcnt(0)")
        RR=XF+16
        for q in range(4): a(f"ds_read_b128 {v(RR+4*q,4)}, v{VT+2} offset:{q*32}")
    else:
        a("s_waitcnt lgkmcnt(0)"); a.waitvm(["b1"])
    a(f"v_cmp_gt_u32 vcc, 32, v{VL}")
    for b in range(nb):
        W=WF+b*4; c=E+8+b
        a(f"v_cvt_pk_bf16_f32 v{W}, v{c}, v{c}"); a(f"v_and_b32 v{E+4}, 0xffff0000, v{W}"); a(f"v_sub_f32 v{E+4}, v{c}, v{E+4}")
        a(f"v_cvt_pk_bf16_f32 v{W+1}, v{E+4}, v{E+4}")
        a(f"v_cndmask_b32 v{W}, 0, v{W}, vcc"); a(f"v_cndmask_b32 v{W+1}, 0, v{W+1}, vcc")
        if typ:
            a(f"v_lshl_or_b32 v{W+2}, v{VB1+b}, 16, v{VB1+b}"); a(f"v_cndmask_b32 v{W+2}, 0, v{W+2}, vcc")
        else: a(f"v_mov_b32 v{W+2}, 0")
        a(f"v_mov_b32 v{W+3}, 0")
    a("s_nop 1")
    for b in range(nb):
        acc=v(ACC+b*16,16); W=v(WF+b*4,4); X=v(XE,4)
        a(f"{MF} {acc}, {X}, {W}, {acc}" if swapped(b) else f"{MF} {acc}, {W}, {X}, {acc}")
    a(f"v_lshlrev_b32 v{VT}, 4, v{VL}")
    a("s_lshl_b32 s65, s58, 2"); a("s_add_u32 s65, s65, s60"); a("s_mul_i32 s65, s65, 144")
    srd(a,36,24,A2_BYTES,WS_A2)
    P=WF+16
    if typ==1:
        a("s_mul_i32 s67, s59, 14"); a("s_add_u32 s65, s65, s67"); a(f"s_add_u32 s65, s65, {wc*8}"); a("s_lshl_b32 s65, s65, 10")
        C0,C1,S2=E+4,E+6,E+8
        a(f"v_mul_f32 v{C0}, {f32(K0)}, v{RS}"); a(f"v_mul_f32 v{C1}, v{RS}, v{RS}"); a(f"v_mul_f32 v{C1}, v{C1}, v{RS}"); a(f"v_mul_f32 v{C1}, {f32(K1c)}, v{C1}")
        a(f"v_mov_b32 v{C0+1}, v{C0}"); a(f"v_mov_b32 v{C1+1}, v{C1}"); a(f"v_mov_b32 v{S2}, v{SD}"); a(f"v_mov_b32 v{S2+1}, v{SD}")
        a("s_nop 7")
        T=E+10
        for b in range(nb):
            for hh in range(2):
                r0=ACC+b*16+hh*8; Tt=T+((b*2+hh)&1)*8; Pp=P+((b*2+hh)&3)*4
                for i in range(0,8,2): a(f"v_pk_mul_f32 {v(Tt+i,2)}, {v(r0+i,2)}, {v(r0+i,2)}")
                for i in range(0,8,2): a(f"v_pk_fma_f32 {v(Tt+i,2)}, {v(Tt+i,2)}, {v(C1,2)}, {v(C0,2)}")
                for i in range(0,8,2): a(f"v_pk_mul_f32 {v(Tt+i,2)}, {v(Tt+i,2)}, {v(r0+i,2)}")
                for i in range(8): a(f"v_exp_f32 v{Tt+i}, v{Tt+i}")
                for i in range(0,8,2): a(f"v_pk_fma_f32 {v(Tt+i,2)}, {v(Tt+i,2)}, {v(S2,2)}, {v(S2,2)}")
                for i in range(8): a(f"v_rcp_f32 v{Tt+i}, v{Tt+i}")
                for i in range(0,8,2): a(f"v_pk_mul_f32 {v(Tt+i,2)}, {v(Tt+i,2)}, {v(r0+i,2)}")
                for i in range(4): a(f"v_cvt_pk_bf16_f32 v{Pp+i}, v{Tt+2*i}, v{Tt+2*i+1}")
                ks=b*2+hh
                if ks==4: a("s_add_u32 s65, s65, 4096")
                a(f"buffer_store_dwordx4 {v(Pp,4)}, v{VT}, s[36:39], s65 offen offset:{(ks&3)*1024}{st}")
    else:
        a("s_lshl_b32 s67, s59, 2"); a("s_add_u32 s65, s65, s67"); a(f"s_add_u32 s65, s65, {112+wc*2}"); a("s_lshl_b32 s65, s65, 10")
        EPS,L2=E+4,E+5
        a(f"v_mov_b32 v{EPS}, {f32(1e-6)}"); a(f"v_mul_f32 v{L2}, {f32(LOG2E)}, v{RS}")
        a("s_waitcnt lgkmcnt(0)"); a("s_nop 7")
        T=E+10
        PK=P; PV=P+8; VA=P+16; VB=P+24
        for hh in range(2):
            r0=ACC+hh*8
            for i in range(8): a(f"v_fma_f32 v{r0+i}, v{r0+i}, v{RR+hh*8+i}, v{EPS}")
            for i in range(8): a(f"v_mul_f32 v{T+i}, {f32(LOG2E)}, v{r0+i}")
            for i in range(8): a(f"v_exp_f32 v{T+i}, v{T+i} clamp")
            for i in range(8): a(f"v_max_f32 v{r0+i}, v{r0+i}, v{EPS}")
            for i in range(8): a(f"v_add_f32 v{r0+i}, v{r0+i}, v{T+i}")
            for i in range(4): a(f"v_cvt_pk_bf16_f32 v{PK+hh*4+i}, v{r0+2*i}, v{r0+2*i+1}")
        for i in range(16): a(f"v_mul_f32 v{ACC+16+i}, v{ACC+16+i}, v{RR+i}")
        for i in range(8): a(f"v_cvt_pk_bf16_f32 v{PV+i}, v{ACC+16+2*i}, v{ACC+17+2*i}")
        a(f"v_and_b32 v{T}, 16, v{VL}"); a(f"v_cmp_eq_u32 vcc, 0, v{T}"); a(f"v_mov_b32 v{T}, 0x3f803f80"); a("s_nop 0")
        for i in range(8):
            a(f"v_cndmask_b32 v{VA+i}, v{T}, v{PV+i}, vcc"); a(f"v_cndmask_b32 v{VB+i}, v{PV+i}, v{T}, vcc")
        a("s_nop 1")
        DA,DB=ACC,ACC+16
        a(f"{MF} {v(DA,16)}, {v(PK,4)}, {v(VA,4)}, 0"); a(f"{MF} {v(DB,16)}, {v(PK,4)}, {v(VB,4)}, 0")
        a(f"{MF} {v(DA,16)}, {v(PK+4,4)}, {v(VA+4,4)}, {v(DA,16)}"); a(f"{MF} {v(DB,16)}, {v(PK+4,4)}, {v(VB+4,4)}, {v(DB,16)}")
        PQ=P+32
        for hh in range(2):
            r0=ACC+32+hh*8
            for i in range(8): a(f"v_mul_f32 v{T+i}, v{L2}, v{r0+i}")
            for i in range(8): a(f"v_fma_f32 v{r0+i}, v{r0+i}, v{RS}, v{EPS}")
            for i in range(8): a(f"v_exp_f32 v{T+i}, v{T+i} clamp")
            for i in range(8): a(f"v_max_f32 v{r0+i}, v{r0+i}, v{EPS}")
            for i in range(8): a(f"v_add_f32 v{r0+i}, v{r0+i}, v{T+i}")
            for i in range(4): a(f"v_cvt_pk_bf16_f32 v{PQ+hh*4+i}, v{r0+2*i}, v{r0+2*i+1}")
            a(f"buffer_store_dwordx4 {v(PQ+hh*4,4)}, v{VT}, s[36:39], s65 offen offset:{hh*1024}{st}")
        a("s_lshl_b32 s65, s3, 12"); a(f"v_add_u32 v{VT+1}, s65, v{VT}")
        for q in range(4):
            src = DA+q*4 if q<2 else DB+q*4
            a(f"ds_write_b128 v{VT+1}, {v(src,4)} offset:{q*1024}")
        a("s_lshl_b32 s65, s60, 10"); a(f"v_add_u32 v{VT+1}, s65, v{VT}")
        a("s_waitcnt lgkmcnt(0)"); a("s_barrier")
        for w in range(4): a(f"ds_read_b128 {v(T+w*4,4)}, v{VT+1} offset:{(wc*4+w)*4096}")
        srd(a,40,24,KVP_BYTES,WS_KVP)
        a("s_lshl_b32 s65, s59, 2"); a("s_lshr_b32 s67, s60, 1"); a("s_add_u32 s65, s65, s67"); a(f"s_add_u32 s65, s65, {wc*2}"); a("s_lshl_b32 s65, s65, 15")
        a("s_lshl_b32 s67, s58, 11"); a("s_add_u32 s65, s65, s67"); a("s_and_b32 s67, s60, 1"); a("s_lshl_b32 s67, s67, 10"); a("s_add_u32 s65, s65, s67")
        a("s_waitcnt lgkmcnt(0)")
        for i in range(4):
            a(f"v_add_f32 v{T+i}, v{T+i}, v{T+4+i}"); a(f"v_add_f32 v{T+8+i}, v{T+8+i}, v{T+12+i}")
        for i in range(4): a(f"v_add_f32 v{T+i}, v{T+i}, v{T+8+i}")
        a(f"buffer_store_dwordx4 {v(T,4)}, v{VT}, s[40:43], s65 offen{st}")
    ts(); ts.flush(VT+2)
    if opt.get("pf",1): a.waitvm(["pf"])
    if wc==1:
        a("s_cmp_lg_u32 s3, 7"); a("s_cbranch_scc1 .Lk1_end")
        srd(a,44,24,KVZ_BYTES,WS_KVZ)
        a("s_lshl_b32 s65, s2, 7"); a(f"v_lshlrev_b32 v{VT+1}, 2, v{VL}"); a(f"v_mov_b32 v{VT+2}, -1")
        a("s_mov_b32 exec_hi, 0")
        a(f"buffer_store_dword v{VT+2}, v{VT+1}, s[44:47], s65 offen")
    a("s_endpgm")
def gen_k1(name,opt):
    a=A(); a.raw(khead(name))
    a("s_cmp_ge_u32 s2, 256"); a("s_cbranch_scc1 .Lk1_end")
    ts=TS(a,opt.get("ts",0),0); ts.start()
    load_args(a)
    a("v_lshrrev_b32 v1, 6, v0"); a("v_and_b32 v0, 63, v0"); a("v_readfirstlane_b32 s3, v1")
    a("s_and_b32 s56, s2, 7"); a("s_lshr_b32 s57, s2, 3")
    a("s_and_b32 s58, s56, 1"); a("s_lshl_b32 s58, s58, 3"); a("s_and_b32 s59, s57, 7"); a("s_add_u32 s58, s58, s59")
    a("s_lshr_b32 s56, s56, 1"); a("s_lshl_b32 s56, s56, 2"); a("s_lshr_b32 s57, s57, 3"); a("s_add_u32 s56, s56, s57")
    a("s_and_b32 s57, s56, 1"); a("s_lshr_b32 s59, s56, 1")
    if opt.get("rot",1): a("s_lshl_b32 s71, s56, 1"); a("s_add_u32 s71, s71, s58")
    else: a("s_mov_b32 s71, 0")
    a("s_and_b32 s60, s3, 3"); a("s_lshl_b32 s61, s60, 6"); a("s_lshl_b32 s62, s60, 10"); a("s_lshl_b32 s63, s58, 17")
    a(f"v_lshrrev_b32 v{VT}, 3, v0"); a("s_lshl_b32 s64, s60, 3"); a(f"v_add_u32 v{VT}, s64, v{VT}")
    a(f"v_bfe_u32 v{VT+1}, v{VT}, 1, 3"); a(f"v_and_b32 v{VT+2}, 7, v0"); a(f"v_xor_b32 v{VT+1}, v{VT+1}, v{VT+2}")
    a(f"v_lshlrev_b32 v{VT}, 10, v{VT}"); a(f"v_lshl_add_u32 v{VXG}, v{VT+1}, 4, v{VT}")
    a("s_waitcnt lgkmcnt(0)")
    srd(a,28,4,2048*1024)
    a("s_lshr_b32 s64, s3, 2"); a("s_lshl_b32 s65, s57, 1"); a("s_add_u32 s64, s64, s65")
    a("s_cmp_eq_u32 s64, 1"); a("s_cbranch_scc1 .Lk1_A1")
    a("s_cmp_eq_u32 s64, 2"); a("s_cbranch_scc1 .Lk1_B0")
    a("s_cmp_eq_u32 s64, 3"); a("s_cbranch_scc1 .Lk1_B1")
    for typ in range(2):
        for wc in range(2): gen_path(a,typ,wc,opt,ts)
    a.label(".Lk1_end"); a("s_endpgm")
    return a.text()+kdesc(name,256)
```

```python
from asmlib import *
WS_A2=0; A2_BYTES=64*144*1024
WS_KVP=0x900000; KVP_BYTES=32*16*2048
WS_KVZ=0xA00000; KVZ_BYTES=32*1024
MF="v_mfma_f32_32x32x16_bf16"
def load_args(a):
    a("s_load_dwordx16 s[4:19], s[0:1], 0")
    a("s_load_dwordx4 s[20:23], s[0:1], 64")
    a("s_load_dwordx2 s[24:25], s[0:1], 80")
def gen_k2(name, opt):
    a=A(); a.raw(khead(name))
    a("s_cmp_ge_u32 s2, 256"); a("s_cbranch_scc1 .Lk2_end")
    ts=TS(a,opt.get("ts",0),1); ts.start()
    load_args(a)
    a("v_lshrrev_b32 v7, 6, v0"); a("v_and_b32 v0, 63, v0")
    a("v_readfirstlane_b32 s3, v7")
    a("s_and_b32 s60, s2, 7"); a("s_lshr_b32 s61, s2, 3")
    a("s_lshl_b32 s60, s60, 2"); a("s_lshr_b32 s62, s61, 3"); a("s_add_u32 s60, s60, s62")
    a("s_and_b32 s61, s61, 7")
    a("v_lshlrev_b32 v1, 4, v0"); a("v_add_u32 v2, 0x24000, v1")
    a("v_lshrrev_b32 v3, 3, v0"); a("v_lshlrev_b32 v3, 10, v3")
    a("v_and_b32 v4, 7, v0"); a("v_lshrrev_b32 v5, 2, v0"); a("v_and_b32 v5, 4, v5"); a("v_xor_b32 v4, v4, v5")
    a("v_lshl_add_u32 v3, v4, 4, v3")
    a("v_lshrrev_b32 v4, 5, v0"); a("v_lshlrev_b32 v4, 9, v4")
    a("v_bfe_u32 v5, v0, 2, 2"); a("v_lshl_add_u32 v4, v5, 7, v4")
    a("v_bfe_u32 v5, v0, 3, 1"); a("v_lshl_add_u32 v4, v5, 6, v4")
    a("v_bfe_u32 v5, v0, 4, 1"); a("v_lshl_add_u32 v4, v5, 5, v4")
    a("v_and_b32 v5, 3, v0"); a("v_lshl_add_u32 v4, v5, 3, v4")
    a("s_mul_i32 s62, s3, 20480")
    a("v_add_u32 v4, s62, v4"); a("v_xor_b32 v5, 64, v4")
    a("v_lshrrev_b32 v6, 3, v0"); a("v_lshlrev_b32 v6, 10, v6"); a("v_and_b32 v7, 7, v0"); a("v_lshlrev_b32 v7, 4, v7")
    a("v_add_u32 v6, v6, v7")
    a("s_lshl_b32 s63, s60, 16"); a("s_lshl_b32 s64, s3, 13"); a("s_add_u32 s63, s63, s64")
    a("s_lshl_b32 s64, s61, 7"); a("s_add_u32 s63, s63, s64")
    a("s_waitcnt lgkmcnt(0)")
    srd(a,28,24,A2_BYTES,WS_A2); srd(a,32,16,1792*1024); srd(a,36,8,512*1024)
    srd(a,52,24,KVP_BYTES,WS_KVP); srd(a,56,24,KVZ_BYTES,WS_KVZ)
    a("s_cmp_lg_u32 s3, 0"); a("s_cbranch_scc1 .Lk2_nored0")
    a("v_and_b32 v16, 3, v0"); a("v_lshlrev_b32 v16, 11, v16"); a("v_lshrrev_b32 v17, 2, v0"); a("v_lshl_add_u32 v16, v17, 4, v16")
    a("s_lshr_b32 s65, s2, 3"); a("s_lshl_b32 s65, s65, 15"); a("s_and_b32 s66, s2, 7"); a("s_lshl_b32 s66, s66, 8"); a("s_add_u32 s65, s65, s66")
    for i in range(4):
        a(f"buffer_load_dwordx4 {v(240+4*i,4)}, v16, s[52:55], s65 offen")
        if i<3: a("s_add_u32 s65, s65, 8192")
    a.label(".Lk2_nored0")
    a("s_mul_i32 s66, s60, 288"); a("s_mul_i32 s67, s3, 14"); a("s_add_u32 s67, s67, s66"); a("s_lshl_b32 s67, s67, 10")
    a("s_lshl_b32 s68, s3, 2"); a("s_add_u32 s68, s68, s66"); a("s_add_u32 s68, s68, 112"); a("s_lshl_b32 s68, s68, 10")
    a("s_mul_i32 s69, s3, 229376"); a("s_add_u32 s69, s69, s64")
    a("s_lshl_b32 s70, s3, 16"); a("s_add_u32 s70, s70, s64")
    RING=10
    KT=4
    srd(a,40,4,2048*1024); srd(a,44,20,2048*1024); srd(a,48,18,1024)
    a("v_add_u32 v16, s67, v1"); a("v_add_u32 v17, s67, v2"); a("v_add_u32 v18, s69, v3"); a("v_add_u32 v19, 8192, v18")
    if opt.get("rot",1): a("s_mul_i32 s71, s61, 7"); a("s_lshr_b32 s71, s71, 2"); a("s_lshl_b32 s71, s71, 10")
    else: a("s_mov_b32 s71, 0")
    def ktab(i):
        if i==0: a(f"s_mov_b32 s{KT}, s71"); return
        a(f"s_add_u32 s{KT+i}, s{KT+i-1}, 1024"); a(f"s_cmp_eq_u32 s{KT+i}, {14*1024}"); a(f"s_cselect_b32 s{KT+i}, 0, s{KT+i}")
    def dmaB(ks):
        for p in range(2):
            a(f"s_add_u32 m0, s62, {(ks%RING)*2048+p*1024}")
            if ks<14:
                a(f"s_lshl_b32 s71, s{KT+ks}, 4")
                a.vmem(f"buffer_load_dwordx4 v{(18 if ks<RING else 10)+p}, s[32:35], s71 offen lds", f"B{ks}")
            else:
                a(f"s_add_u32 s71, s70, {((ks-14)*16+p*8)*1024}")
                a.vmem(f"buffer_load_dwordx4 v3, s[36:39], s71 offen lds", f"B{ks}")
    def ldA(ks):
        for r in range(2):
            if ks<14: a.vmem(f"buffer_load_dwordx4 {v(96+ks*8+r*4,4)}, v{16+r}, s[28:31], s{KT+ks} offen", f"A{ks}")
            else: a.vmem(f"buffer_load_dwordx4 {v(96+ks*8+r*4,4)}, v{1+r}, s[28:31], s68 offen offset:{(ks-14)*1024}", f"A{ks}")
    for ks in range(18):
        if ks<14: ktab(ks)
        if ks<RING: dmaB(ks)
        ldA(ks)
    a("v_mov_b32 v10, v18"); a("v_mov_b32 v11, v19")
    a.vmem("buffer_load_dword v8, v7, s[44:47], s63 offen","T")
    ts()
    a("s_cmp_lg_u32 s3, 0"); a("s_cbranch_scc1 .Lk2_nored1")
    a(f"s_waitcnt vmcnt({len(a.vm)})")
    for i in range(4):
        a(f"v_add_f32 v{240+i}, v{240+i}, v{244+i}"); a(f"v_add_f32 v{248+i}, v{248+i}, v{252+i}")
    for i in range(4): a(f"v_add_f32 v{240+i}, v{240+i}, v{248+i}")
    a("s_nop 1")
    for i in range(4): a(f"v_add_f32_dpp v{244+i}, v{240+i}, v{240+i} quad_perm:[1,0,3,2] row_mask:0xf bank_mask:0xf")
    a("s_nop 1")
    for i in range(4): a(f"v_add_f32_dpp v{240+i}, v{244+i}, v{244+i} quad_perm:[2,3,0,1] row_mask:0xf bank_mask:0xf")
    a("v_cvt_pk_bf16_f32 v244, v240, v241"); a("v_cvt_pk_bf16_f32 v245, v242, v243")
    a("v_lshrrev_b32 v16, 2, v0"); a("v_lshlrev_b32 v16, 4, v16")
    a("s_lshr_b32 s65, s2, 3"); a("s_lshl_b32 s65, s65, 10"); a("s_and_b32 s66, s2, 3"); a("s_lshl_b32 s66, s66, 8"); a("s_add_u32 s65, s65, s66")
    a("s_bfe_u32 s66, s2, 0x10002"); a("s_lshl_b32 s66, s66, 3"); a("s_add_u32 s65, s65, s66")
    a("s_mov_b32 exec_lo, 0x11111111"); a("s_mov_b32 exec_hi, 0x11111111")
    a("buffer_store_dwordx2 v[244:245], v16, s[56:59], s65 offen sc1")
    a("s_mov_b64 exec, -1")
    a.label(".Lk2_nored1")
    a("s_lshl_b32 s73, s3, 12")
    def rdB(ks):
        for c in range(2):
            for h in range(2):
                a(f"ds_read_b64_tr_b16 {v(16+(ks&1)*8+c*4+h*2,2)}, v{4+c} offset:{(ks%RING)*2048+h*1024}")
    def ldKVZ(track=True):
        for i in range(4):
            t=f"buffer_load_dwordx4 {v(240+4*i,4)}, v1, s[56:59], s73 offen offset:{i*1024} sc1"
            if track: a.vmem(t,"KVZ")
            else: a(t)
    def chkKVZ():
        a("v_max3_u32 v96, v240, v241, v242")
        for i in range(3,15,2): a(f"v_max3_u32 v96, v96, v{240+i}, v{241+i}")
        a("v_max_u32 v96, v96, v255")
        a("v_cmp_eq_u32 vcc, -1, v96"); a("s_nop 1")
    a.waitvm(["B0"]); ts(); rdB(0)
    for ks in range(18):
        if ks in (5,9,13): ts()
        if ks==13:
            a.waitvm(["KVZ"]); chkKVZ()
            a("s_cbranch_vccz .Lk2_kvok")
            a("s_mov_b32 s77, 0x40000")
            a.label(".Lk2_kvloop")
            a("s_sleep 2"); ldKVZ(False); a("s_waitcnt vmcnt(0)"); chkKVZ()
            a("s_cbranch_vccz .Lk2_kvok")
            a("s_sub_u32 s77, s77, 1"); a("s_cmp_lg_u32 s77, 0"); a("s_cbranch_scc1 .Lk2_kvloop")
            a.label(".Lk2_kvok"); ts()
        need=[f"A{ks}"]+([f"B{ks+1}"] if ks<17 else [])
        if ks in (13,15): need+= [f"A{ks+1}",f"A{ks+2}"]
        a.waitvm(need)
        if ks<17: rdB(ks+1)
        if ks in (13,15):
            for hh in range(2):
                for r in range(2):
                    k2=ks+1+hh
                    a(f"{MF} {v(96+(hh*2+r)*16,16)}, {v(240+(k2-14)*4,4)}, {v(96+k2*8+r*4,4)}, 0")
        a(f"s_waitcnt lgkmcnt({4 if ks<17 else 0})")
        for c in range(2):
            for r in range(2):
                acc=v(32+(c*2+r)*16,16)
                a(f"{MF} {acc}, {v(16+(ks&1)*8+c*4,4)}, {v(96+ks*8+r*4,4)}, {acc if ks else 0}")
        if ks in (13,15):
            for hh in range(2):
                for r in range(2):
                    D=96+(hh*2+r)*16; num=D+(8 if hh else 0); den=D+(0 if hh else 8)
                    a(f"v_add_f32 v{den}, {f32(1e-6)}, v{den}"); a(f"v_rcp_f32 v{den}, v{den}")
            for hh in range(2):
                for r in range(2):
                    k2=ks+1+hh
                    D=96+(hh*2+r)*16; num=D+(8 if hh else 0); den=D+(0 if hh else 8)
                    for i in range(8): a(f"v_mul_f32 v{num+i}, v{num+i}, v{den}")
                    for i in range(4): a(f"v_cvt_pk_bf16_f32 v{96+k2*8+r*4+i}, v{num+2*i}, v{num+2*i+1}")
            a("s_nop 1")
        if ks+RING<18: dmaB(ks+RING)
        if ks==8:
            ldKVZ()
            a.vmem("buffer_load_dwordx4 v[8:11], v6, s[40:43], s63 offen","X")
            a.vmem("buffer_load_dwordx4 v[12:15], v7, s[48:51], s64 offen","X")
    ts()
    a("s_mul_i32 s62, s3, 17408"); a("v_add_u32 v16, s62, v1")
    a("v_bfe_u32 v17, v0, 2, 1"); a("v_lshlrev_b32 v17, 3, v17"); a("v_and_b32 v18, 3, v0"); a("v_add_u32 v17, v17, v18")
    a("s_lshr_b32 s65, s3, 2"); a("s_lshl_b32 s65, s65, 2"); a("v_add_u32 v17, s65, v17"); a("v_mul_u32_u24 v17, 1088, v17")
    a("s_and_b32 s65, s3, 3"); a("s_lshl_b32 s65, s65, 7"); a("v_lshrrev_b32 v18, 3, v0"); a("v_lshl_add_u32 v17, v18, 4, v17"); a("v_add_u32 v17, s65, v17")
    a("v_add_u32 v18, 69632, v17")
    a("s_nop 7")
    a("s_barrier")
    for q in range(16): a(f"ds_write_b128 v16, {v(32+q*4,4)} offset:{q*1088}")
    a("s_waitcnt lgkmcnt(0)"); a("s_barrier"); ts()
    for w in range(8):
        for h in range(2):
            a(f"ds_read_b128 {v(96+w*8+h*4,4)}, v{17+(w>>2)} offset:{(w&3)*17408+h*512}")
    a.waitvm(["X"])
    for i in range(4):
        a(f"v_lshlrev_b32 v{32+2*i}, 16, v{8+i}"); a(f"v_and_b32 v{33+2*i}, 0xffff0000, v{8+i}")
        a(f"v_lshlrev_b32 v{40+2*i}, 16, v{12+i}"); a(f"v_and_b32 v{41+2*i}, 0xffff0000, v{12+i}")
    for i in range(8): a(f"v_add_f32 v{32+i}, v{32+i}, v{40+i}")
    for w in range(8):
        a(f"s_waitcnt lgkmcnt({14-2*w})")
        for i in range(8): a(f"v_add_f32 v{32+i}, v{32+i}, v{96+w*8+i}")
    for i in range(4): a(f"v_cvt_pk_bf16_f32 v{40+i}, v{32+2*i}, v{33+2*i}")
    a("buffer_store_dwordx4 v[40:43], v6, s[44:47], s63 offen")
    ts.flush(20)
    a.label(".Lk2_end"); a("s_endpgm")
    return a.text()+kdesc(name,256)
```

```python
import struct
class A:
    def __init__(s):
        s.L=[]; s.vm=[]; s.lab=0; s.dq=[]; s.dsdone=0
    def __call__(s, t): s.L.append("    "+t)
    def raw(s,t): s.L.append(t)
    def label(s,n): s.L.append(n+":")
    def newlabel(s,p="L"):
        s.lab+=1; return f".{p}{s.lab}"
    def vmem(s, t, name):
        s(t); s.vm.append(name)
    def vmN(s, names):
        idx=max(max(i for i,n in enumerate(s.vm) if n==x) for x in names)
        return len(s.vm)-1-idx
    def waitvm(s, names, extra=""):
        n=s.vmN(names); assert n<=63, n
        s(f"s_waitcnt vmcnt({n}){extra}")
    def ds(s,t,name="_"):
        s(t); s.dq.append(name)
    def dsN(s,names):
        idx=-1
        for x in names:
            c=[i for i,n in enumerate(s.dq) if n==x]
            assert c, x
            idx=max(idx,max(c))
        return len(s.dq)-1-idx
    def waitds(s,names):
        n=min(s.dsN(names),15)
        done=len(s.dq)-n
        if done<=s.dsdone: return
        s.dsdone=done
        s(f"s_waitcnt lgkmcnt({n})")
    def allds(s): s.dsdone=len(s.dq)
    def emit(s,items):
        for it in items:
            if callable(it): it()
            else: s(it)
    def text(s): return "\n".join(s.L)+"\n"
def v(i,n=1): return f"v{i}" if n==1 else f"v[{i}:{i+n-1}]"
def sg(i,n=1): return f"s{i}" if n==1 else f"s[{i}:{i+n-1}]"
def f32(x): return "0x%08x"%struct.unpack("<I",struct.pack("<f",x))[0]
def interleave(mf, fill):
    out=[]; n=len(mf); k=0
    for i,m in enumerate(mf):
        out.append(m)
        tgt=(len(fill)*(i+1))//n
        while k<tgt: out.append(fill[k]); k+=1
    return out
def srd(a, s0, ptr, nbytes, off=0):
    if off:
        a(f"s_add_u32 s{s0}, s{ptr}, {off}"); a(f"s_addc_u32 s{s0+1}, s{ptr+1}, 0")
        a(f"s_and_b32 s{s0+1}, s{s0+1}, 0xffff")
    else:
        a(f"s_mov_b32 s{s0}, s{ptr}"); a(f"s_and_b32 s{s0+1}, s{ptr+1}, 0xffff")
    a(f"s_mov_b32 s{s0+2}, {nbytes}"); a(f"s_mov_b32 s{s0+3}, 0x00020000")
def kdesc(name, vg, sgp=102):
    return f""".section .rodata,"a"
.p2align 6
.amdhsa_kernel {name}
  .amdhsa_next_free_vgpr {vg}
  .amdhsa_next_free_sgpr {sgp}
  .amdhsa_accum_offset {vg}
  .amdhsa_group_segment_fixed_size 0
  .amdhsa_kernarg_size 88
  .amdhsa_user_sgpr_count 2
  .amdhsa_user_sgpr_kernarg_segment_ptr 1
  .amdhsa_system_sgpr_workgroup_id_x 1
.end_amdhsa_kernel
"""
def khead(name):
    return f""".text
.globl {name}
.p2align 8
.type {name},@function
{name}:
"""

TS_BASE=16<<20
class TS:
    def __init__(s,a,on,kid): s.a=a; s.on=on; s.n=0; s.kid=kid
    def start(s):
        if s.on: s.a("s_memrealtime s[78:79]"); s.a("s_memtime s[80:81]"); s.n=2
    def __call__(s):
        if s.on and s.n<11:
            s.a(f"s_memtime s[{78+2*s.n}:{79+2*s.n}]"); s.n+=1
    def reset(s,n): s.n=n
    def flush(s,vt):
        if not s.on: return
        a=s.a
        a("s_waitcnt vmcnt(0)")
        a(f"s_memtime s[{78+2*s.n}:{79+2*s.n}]"); n=s.n+1
        a("s_mov_b64 exec, 1")
        srd(a,52,24,4<<20,TS_BASE)
        a("s_lshl_b32 s76, s2, 3"); a("s_add_u32 s76, s76, s3"); a("s_lshl_b32 s76, s76, 7"); a(f"s_add_u32 s76, s76, {s.kid<<20}")
        a("s_waitcnt lgkmcnt(0)")
        a(f"v_mov_b32 v{vt+2}, 0")
        for i in range(n):
            a(f"v_mov_b32 v{vt}, s{78+2*i}"); a(f"v_mov_b32 v{vt+1}, s{79+2*i}")
            a(f"buffer_store_dwordx2 v[{vt}:{vt+1}], v{vt+2}, s[52:55], s76 offen offset:{i*8}"); a("s_nop 1")
        a("s_mov_b64 exec, -1")

def merge(main, side, start=0, end=None):
    n=len(main); end=n if end is None else end
    out=[]; k=0
    for i,gp in enumerate(main):
        out+=gp
        if start<=i<end:
            tgt=(len(side)*(i-start+1))//(end-start)
            while k<tgt: out.append(side[k]); k+=1
    return out
def mix(a,b):
    n=max(len(a),len(b),1); F=[]; i=j=0
    for q in range(n):
        while i<(len(a)*(q+1))//n: F.append(a[i]); i+=1
        while j<(len(b)*(q+1))//n: F.append(b[j]); j+=1
    return F
```

```python
from asmlib import *
WS_A2=0; A2_BYTES=64*144*1024
WS_KVP=0x900000; KVP_BYTES=32*16*2048
WS_KVZ=0xA00000; KVZ_BYTES=32*1024
MF="v_mfma_f32_32x32x16_bf16"
def load_args(a):
    a("s_load_dwordx16 s[4:19], s[0:1], 0")
    a("s_load_dwordx4 s[20:23], s[0:1], 64")
    a("s_load_dwordx2 s[24:25], s[0:1], 80")
def gen_k2(name, opt):
    a=A(); a.raw(khead(name))
    a("s_cmp_ge_u32 s2, 256"); a("s_cbranch_scc1 .Lk2_end")
    ts=TS(a,opt.get("ts",0),1); ts.start()
    load_args(a)
    a("v_lshrrev_b32 v7, 6, v0"); a("v_and_b32 v0, 63, v0")
    a("v_readfirstlane_b32 s3, v7")
    a("s_and_b32 s60, s2, 7"); a("s_lshr_b32 s61, s2, 3")
    a("s_lshl_b32 s60, s60, 2"); a("s_lshr_b32 s62, s61, 3"); a("s_add_u32 s60, s60, s62")
    a("s_and_b32 s61, s61, 7")
    a("v_lshlrev_b32 v1, 4, v0"); a("v_add_u32 v2, 0x24000, v1")
    a("v_lshrrev_b32 v3, 3, v0"); a("v_lshlrev_b32 v3, 10, v3")
    a("v_and_b32 v4, 7, v0"); a("v_lshrrev_b32 v5, 2, v0"); a("v_and_b32 v5, 4, v5"); a("v_xor_b32 v4, v4, v5")
    a("v_lshl_add_u32 v3, v4, 4, v3")
    a("v_lshrrev_b32 v4, 5, v0"); a("v_lshlrev_b32 v4, 9, v4")
    a("v_bfe_u32 v5, v0, 2, 2"); a("v_lshl_add_u32 v4, v5, 7, v4")
    a("v_bfe_u32 v5, v0, 3, 1"); a("v_lshl_add_u32 v4, v5, 6, v4")
    a("v_bfe_u32 v5, v0, 4, 1"); a("v_lshl_add_u32 v4, v5, 5, v4")
    a("v_and_b32 v5, 3, v0"); a("v_lshl_add_u32 v4, v5, 3, v4")
    a("s_mul_i32 s62, s3, 20480")
    a("v_add_u32 v4, s62, v4"); a("v_xor_b32 v5, 64, v4")
    a("v_lshrrev_b32 v6, 3, v0"); a("v_lshlrev_b32 v6, 10, v6"); a("v_and_b32 v7, 7, v0"); a("v_lshlrev_b32 v7, 4, v7")
    a("v_add_u32 v6, v6, v7")
    a("s_lshl_b32 s63, s60, 16"); a("s_lshl_b32 s64, s3, 13"); a("s_add_u32 s63, s63, s64")
    a("s_lshl_b32 s64, s61, 7"); a("s_add_u32 s63, s63, s64")
    a("s_waitcnt lgkmcnt(0)")
    srd(a,28,24,A2_BYTES,WS_A2); srd(a,32,16,1792*1024); srd(a,36,8,512*1024)
    srd(a,52,24,KVP_BYTES,WS_KVP); srd(a,56,24,KVZ_BYTES,WS_KVZ)
    a("s_cmp_lg_u32 s3, 0"); a("s_cbranch_scc1 .Lk2_nored0")
    a("v_and_b32 v16, 3, v0"); a("v_lshlrev_b32 v16, 11, v16"); a("v_lshrrev_b32 v17, 2, v0"); a("v_lshl_add_u32 v16, v17, 4, v16")
    a("s_lshr_b32 s65, s2, 3"); a("s_lshl_b32 s65, s65, 15"); a("s_and_b32 s66, s2, 7"); a("s_lshl_b32 s66, s66, 8"); a("s_add_u32 s65, s65, s66")
    for i in range(4):
        a(f"buffer_load_dwordx4 {v(240+4*i,4)}, v16, s[52:55], s65 offen")
        if i<3: a("s_add_u32 s65, s65, 8192")
    a.label(".Lk2_nored0")
    a("s_mul_i32 s66, s60, 288"); a("s_mul_i32 s67, s3, 14"); a("s_add_u32 s67, s67, s66"); a("s_lshl_b32 s67, s67, 10")
    a("s_lshl_b32 s68, s3, 2"); a("s_add_u32 s68, s68, s66"); a("s_add_u32 s68, s68, 112"); a("s_lshl_b32 s68, s68, 10")
    a("s_mul_i32 s69, s3, 229376"); a("s_add_u32 s69, s69, s64")
    a("s_lshl_b32 s70, s3, 16"); a("s_add_u32 s70, s70, s64")
    RING=10
    KT=4
    srd(a,40,4,2048*1024); srd(a,44,20,2048*1024); srd(a,48,18,1024)
    a("v_add_u32 v8, s67, v1"); a("v_add_u32 v9, s67, v2"); a("v_add_u32 v10, s69, v3"); a("v_add_u32 v11, 8192, v10")
    if opt.get("rot",1): a("s_mul_i32 s71, s61, 7"); a("s_lshr_b32 s71, s71, 2"); a("s_lshl_b32 s71, s71, 10")
    else: a("s_mov_b32 s71, 0")
    def ktab(i):
        if i==0: a(f"s_mov_b32 s{KT}, s71"); return
        a(f"s_add_u32 s{KT+i}, s{KT+i-1}, 1024"); a(f"s_cmp_eq_u32 s{KT+i}, {14*1024}"); a(f"s_cselect_b32 s{KT+i}, 0, s{KT+i}")
    def dmaB(ks):
        for p in range(2):
            a(f"s_add_u32 m0, s62, {(ks%RING)*2048+p*1024}")
            if ks<14:
                a(f"s_lshl_b32 s71, s{KT+ks}, 4")
                a.vmem(f"buffer_load_dwordx4 v{10+p}, s[32:35], s71 offen lds", f"B{ks}")
            else:
                a(f"s_add_u32 s71, s70, {((ks-14)*16+p*8)*1024}")
                a.vmem(f"buffer_load_dwordx4 v3, s[36:39], s71 offen lds", f"B{ks}")
    def ldA(ks):
        for r in range(2):
            if ks<14: a.vmem(f"buffer_load_dwordx4 {v(96+ks*8+r*4,4)}, v{8+r}, s[28:31], s{KT+ks} offen", f"A{ks}")
            else: a.vmem(f"buffer_load_dwordx4 {v(96+ks*8+r*4,4)}, v{1+r}, s[28:31], s68 offen offset:{(ks-14)*1024}", f"A{ks}")
    PD=opt.get("pd",5)
    if opt.get("tA",1):
        a("s_mul_i32 s72, s60, 294912"); a("s_lshl_b32 s74, s61, 3"); a("s_add_u32 s74, s74, s3"); a("s_mul_i32 s74, s74, 4608"); a("s_add_u32 s72, s72, s74")
        a("v_min_u32 v13, 35, v0"); a("v_lshlrev_b32 v13, 7, v13")
        a.vmem("buffer_load_dword v14, v13, s[28:31], s72 offen","T")
    for ks in range(14):
        ktab(ks)
        if ks<RING: dmaB(ks)
    for ks in range(PD): ldA(ks)
    a.vmem("buffer_load_dword v12, v7, s[44:47], s63 offen","T")
    ts()
    a("s_cmp_lg_u32 s3, 0"); a("s_cbranch_scc1 .Lk2_nored1")
    a(f"s_waitcnt vmcnt({len(a.vm)})")
    for i in range(4):
        a(f"v_add_f32 v{240+i}, v{240+i}, v{244+i}"); a(f"v_add_f32 v{248+i}, v{248+i}, v{252+i}")
    for i in range(4): a(f"v_add_f32 v{240+i}, v{240+i}, v{248+i}")
    a("s_nop 1")
    for i in range(4): a(f"v_add_f32_dpp v{244+i}, v{240+i}, v{240+i} quad_perm:[1,0,3,2] row_mask:0xf bank_mask:0xf")
    a("s_nop 1")
    for i in range(4): a(f"v_add_f32_dpp v{240+i}, v{244+i}, v{244+i} quad_perm:[2,3,0,1] row_mask:0xf bank_mask:0xf")
    a("v_cvt_pk_bf16_f32 v244, v240, v241"); a("v_cvt_pk_bf16_f32 v245, v242, v243")
    a("v_lshrrev_b32 v16, 2, v0"); a("v_lshlrev_b32 v16, 4, v16")
    a("s_lshr_b32 s65, s2, 3"); a("s_lshl_b32 s65, s65, 10"); a("s_and_b32 s66, s2, 3"); a("s_lshl_b32 s66, s66, 8"); a("s_add_u32 s65, s65, s66")
    a("s_bfe_u32 s66, s2, 0x10002"); a("s_lshl_b32 s66, s66, 3"); a("s_add_u32 s65, s65, s66")
    a("s_mov_b32 exec_lo, 0x11111111"); a("s_mov_b32 exec_hi, 0x11111111")
    a("buffer_store_dwordx2 v[244:245], v16, s[56:59], s65 offen sc1")
    a("s_mov_b64 exec, -1")
    a.label(".Lk2_nored1")
    a("s_lshl_b32 s73, s3, 12")
    def rdB(ks):
        for c in range(2):
            for h in range(2):
                a(f"ds_read_b64_tr_b16 {v(16+(ks&1)*8+c*4+h*2,2)}, v{4+c} offset:{(ks%RING)*2048+h*1024}")
    def ldKVZ(track=True):
        for i in range(4):
            t=f"buffer_load_dwordx4 {v(240+4*i,4)}, v1, s[56:59], s73 offen offset:{i*1024} sc1"
            if track: a.vmem(t,"KVZ")
            else: a(t)
    def chkKVZ():
        a("v_max3_u32 v96, v240, v241, v242")
        for i in range(3,15,2): a(f"v_max3_u32 v96, v96, v{240+i}, v{241+i}")
        a("v_max_u32 v96, v96, v255")
        a("v_cmp_eq_u32 vcc, -1, v96"); a("s_nop 1")
    a.waitvm(["B0"]); ts(); rdB(0)
    for ks in range(18):
        if ks in (5,9,13): ts()
        if ks==13:
            a.waitvm(["KVZ"]); chkKVZ()
            a("s_cbranch_vccz .Lk2_kvok")
            a("s_mov_b32 s77, 0x40000")
            a.label(".Lk2_kvloop")
            a("s_sleep 2"); ldKVZ(False); a("s_waitcnt vmcnt(0)"); chkKVZ()
            a("s_cbranch_vccz .Lk2_kvok")
            a("s_sub_u32 s77, s77, 1"); a("s_cmp_lg_u32 s77, 0"); a("s_cbranch_scc1 .Lk2_kvloop")
            a.label(".Lk2_kvok"); ts()
        need=[f"A{ks}"]+([f"B{ks+1}"] if ks<17 else [])
        if ks in (13,15): need+= [f"A{ks+1}",f"A{ks+2}"]
        a.waitvm(need)
        if ks<17: rdB(ks+1)
        if ks in (13,15):
            for hh in range(2):
                for r in range(2):
                    k2=ks+1+hh
                    a(f"{MF} {v(96+(hh*2+r)*16,16)}, {v(240+(k2-14)*4,4)}, {v(96+k2*8+r*4,4)}, 0")
        a(f"s_waitcnt lgkmcnt({4 if ks<17 else 0})")
        for c in range(2):
            for r in range(2):
                acc=v(32+(c*2+r)*16,16)
                a(f"{MF} {acc}, {v(16+(ks&1)*8+c*4,4)}, {v(96+ks*8+r*4,4)}, {acc if ks else 0}")
        if ks in (13,15):
            for hh in range(2):
                for r in range(2):
                    D=96+(hh*2+r)*16; num=D+(8 if hh else 0); den=D+(0 if hh else 8)
                    a(f"v_add_f32 v{den}, {f32(1e-6)}, v{den}"); a(f"v_rcp_f32 v{den}, v{den}")
            for hh in range(2):
                for r in range(2):
                    k2=ks+1+hh
                    D=96+(hh*2+r)*16; num=D+(8 if hh else 0); den=D+(0 if hh else 8)
                    for i in range(8): a(f"v_mul_f32 v{num+i}, v{num+i}, v{den}")
                    for i in range(4): a(f"v_cvt_pk_bf16_f32 v{96+k2*8+r*4+i}, v{num+2*i}, v{num+2*i+1}")
            a("s_nop 1")
        if ks+PD<18: ldA(ks+PD)
        if ks+RING<18: dmaB(ks+RING)
        if ks==8: ldKVZ()
        if ks==18-PD:
            a.vmem("buffer_load_dwordx4 v[8:11], v6, s[40:43], s63 offen","X")
            a.vmem("buffer_load_dwordx4 v[12:15], v7, s[48:51], s64 offen","X")
    ts()
    a("v_add_u32 v16, s62, v1")
    a("v_bfe_u32 v17, v0, 2, 1"); a("v_lshlrev_b32 v17, 3, v17"); a("v_and_b32 v18, 3, v0"); a("v_add_u32 v17, v17, v18")
    a("s_lshr_b32 s65, s3, 2"); a("s_lshl_b32 s65, s65, 2"); a("v_add_u32 v17, s65, v17"); a("v_mul_u32_u24 v17, 1088, v17")
    a("s_and_b32 s65, s3, 3"); a("s_lshl_b32 s65, s65, 7"); a("v_lshrrev_b32 v18, 3, v0"); a("v_lshl_add_u32 v17, v18, 4, v17"); a("v_add_u32 v17, s65, v17")
    a("v_add_u32 v18, 61440, v17"); a("v_add_u32 v19, 61440, v18")
    a("s_nop 3")
    for q in range(16): a(f"ds_write_b128 v16, {v(32+q*4,4)} offset:{q*1088}")
    a("s_waitcnt lgkmcnt(0)"); a("s_barrier"); ts()
    for w in range(8):
        for h in range(2):
            a(f"ds_read_b128 {v(96+w*8+h*4,4)}, v{17+w//3} offset:{(w%3)*20480+h*512}")
    a.waitvm(["X"])
    for i in range(4):
        a(f"v_lshlrev_b32 v{32+2*i}, 16, v{8+i}"); a(f"v_and_b32 v{33+2*i}, 0xffff0000, v{8+i}")
        a(f"v_lshlrev_b32 v{40+2*i}, 16, v{12+i}"); a(f"v_and_b32 v{41+2*i}, 0xffff0000, v{12+i}")
    for i in range(8): a(f"v_add_f32 v{32+i}, v{32+i}, v{40+i}")
    for w in range(8):
        a(f"s_waitcnt lgkmcnt({14-2*w})")
        for i in range(0,8,2): a(f"v_pk_add_f32 {v(32+i,2)}, {v(32+i,2)}, {v(96+w*8+i,2)}")
    for i in range(4): a(f"v_cvt_pk_bf16_f32 v{40+i}, v{32+2*i}, v{33+2*i}")
    a("buffer_store_dwordx4 v[40:43], v6, s[44:47], s63 offen")
    ts.flush(20)
    a.label(".Lk2_end"); a("s_endpgm")
    return a.text()+kdesc(name,256)
```

```python
from asmlib import *
from k2 import *
import math
M16="v_mfma_f32_16x16x32_bf16"
K0=-2.0*math.sqrt(2.0/math.pi)*math.log2(math.e); K1c=K0*0.044715
LOG2E=math.log2(math.e)
XS=98304
AUX=147456
AUX_S=AUX+8192
AUX_CS=AUX_S+512
AUX_R=AUX_CS+2048
VL,VXG,VWG,VHG,VXA,VWA,VCA,VHA,VHC,VSA=0,1,2,3,4,8,10,12,13,14
SEL,S1,S2,ONE,VST,VCS,XE,WE,RS,SD,C0,C1,VB1=16,20,21,22,23,24,28,32,36,37,38,39,40
ACC=[44,60]; WF=76; CF=96; T=100; P=116; M=124; X=128
def gen_type(a, typ, opt, ts):
    ts.reset(2); a.vm=[]; a.dq=[]; a.dsdone=0
    st=" sc1" if opt.get("sc1",1) else ""
    a.label(f".Lp1_{'AB'[typ]}")
    pitch = 3584 if typ else 3072
    a(f"v_lshrrev_b32 v{M}, 3, v0"); a("s_lshl_b32 s65, s3, 3"); a(f"v_add_u32 v{M}, s65, v{M}"); a(f"v_mul_u32_u24 v{M}, {pitch}, v{M}")
    a(f"v_and_b32 v{M+1}, 7, v0"); a(f"v_lshrrev_b32 v{M+2}, 2, v0"); a(f"v_and_b32 v{M+2}, 4, v{M+2}"); a(f"v_xor_b32 v{M+1}, v{M+1}, v{M+2}")
    a(f"v_lshl_add_u32 v{VWG}, v{M+1}, 4, v{M}")
    if typ:
        a("s_mul_i32 s64, s59, 448"); a("s_and_b32 s66, s59, 1"); a("s_lshl_b32 s67, s66, 6")
        a("s_xor_b32 s66, s66, 1"); a("s_mul_i32 s66, s66, 384"); a("s_add_u32 s61, s64, s66"); a("s_add_u32 s64, s64, s67")
        srd(a,32,12,512*3584); ccol=[0,128,256]
    else:
        a("s_lshl_b32 s64, s59, 7"); srd(a,32,6,512*3072); ccol=[1024,2048,0]
    creg=[0,65536,0]
    a("s_lshl_b32 s70, s71, 9"); a("s_add_u32 s40, s63, s70"); a("s_sub_u32 s41, s63, s70")
    a(f"s_mul_i32 s73, s71, {256*pitch}"); a("s_add_u32 s42, s64, s73"); a("s_sub_u32 s43, s64, s73")
    def pre2():
        a(f"s_xor_b32 s74, s73, {256*pitch}")
        for r in range(4):
            a(f"s_add_u32 s70, s72, {r}"); a("s_and_b32 s70, s70, 3"); a(f"s_lshl_b32 s{44+r}, s70, 13"); a(f"s_add_u32 s{44+r}, s{44+r}, s62")
            a(f"s_mul_i32 s{48+r}, s70, {64*pitch}"); a(f"s_add_u32 s{48+r}, s{48+r}, s64")
    def dma(kind,i,e=0):
        def f():
            if kind=="x":
                a(f"s_add_u32 m0, s62, {XS+(i%3)*16384+e*8192}"); a(f"s_add_u32 s70, s{40+(i>>2)}, {i*128+e*65536}")
                a.vmem(f"buffer_load_dwordx4 v{VXG}, s[28:31], s70 offen lds", f"x{i}")
            elif kind=="H":
                a(f"s_add_u32 s70, s72, {i}"); a("s_and_b32 s70, s70, 3"); a(f"s_add_u32 m0, s{44+i}, 65536")
                a("s_lshl_b32 s75, s71, 1"); a("s_xor_b32 s70, s70, s75"); a(f"s_mul_i32 s70, s70, {128*pitch}"); a("s_add_u32 s70, s70, s61")
                a.vmem(f"buffer_load_dwordx4 v{VHG}, s[32:35], s70 offen lds", f"H{i}")
            elif kind==0:
                a(f"s_add_u32 m0, s62, {i*8192}"); a(f"s_add_u32 s70, s{42+(i>>2)}, {i*64*pitch+ccol[0]}")
                a.vmem(f"buffer_load_dwordx4 v{VWG}, s[32:35], s70 offen lds", f"c0_{i}")
            else:
                c=kind
                a(f"s_add_u32 m0, s{44+(i&3)}, {creg[c]+(i>>2)*32768}"); a(f"s_add_u32 s70, s{48+(i&3)}, s{73+(i>>2)}")
                if ccol[c]: a(f"s_add_u32 s70, s70, {ccol[c]}")
                a.vmem(f"buffer_load_dwordx4 v{VWG}, s[32:35], s70 offen lds", f"c{c}_{i}")
        return f
    def S(t): return [dma("x",t,0),dma("x",t,1),dma(0,t)]
    a.emit(S(0))
    if opt.get("touch",0):
        a("s_lshr_b32 s65, s2, 3"); a("s_lshl_b32 s65, s65, 3"); a("s_add_u32 s65, s65, s3")
        a("s_and_b32 s66, s2, 1"); a("s_lshl_b32 s66, s66, 20"); a("s_lshl_b32 s67, s65, 12"); a("s_add_u32 s66, s66, s67")
        a(f"v_and_b32 v{M}, 31, v0"); a(f"v_lshlrev_b32 v{M}, 7, v{M}")
        a.vmem(f"buffer_load_dword v{T}, v{M}, s[28:31], s66 offen","pf")
        a("s_lshr_b32 s65, s2, 7"); a("s_lshl_b32 s65, s65, 3"); a("s_bfe_u32 s66, s2, 0x30003"); a("s_add_u32 s65, s65, s66"); a("s_lshl_b32 s65, s65, 3"); a("s_add_u32 s65, s65, s3")
        a(f"s_mul_i32 s65, s65, {4*pitch}"); a("s_lshr_b32 s66, s59, 1")
        a(f"v_bfe_u32 v{M}, v0, 3, 2"); a(f"v_mul_u32_u24 v{M}, {pitch}, v{M}"); a(f"v_and_b32 v{M+1}, 7, v0")
        if typ:
            a("s_mul_i32 s66, s66, 896"); a(f"v_min_u32 v{M+1}, 6, v{M+1}"); a(f"v_lshl_add_u32 v{M}, v{M+1}, 7, v{M}")
        else:
            a("s_lshl_b32 s66, s66, 8"); a(f"v_min_u32 v{M+1}, 5, v{M+1}")
            a(f"v_lshrrev_b32 v{M+2}, 1, v{M+1}"); a(f"v_lshl_add_u32 v{M}, v{M+2}, 10, v{M}"); a(f"v_and_b32 v{M+1}, 1, v{M+1}"); a(f"v_lshl_add_u32 v{M}, v{M+1}, 7, v{M}")
        a("s_add_u32 s65, s65, s66")
        a.vmem(f"buffer_load_dword v{T+1}, v{M}, s[32:35], s65 offen","pf")
    a.emit(S(1)+S(2)); pre2()
    if typ:
        srd(a,36,14,3584)
        a(f"v_and_b32 v{M}, 31, v0"); a(f"v_lshlrev_b32 v{M}, 1, v{M}"); a("s_lshl_b32 s65, s56, 6"); a("s_add_u32 s65, s65, s64")
        for c in range(3): a.vmem(f"buffer_load_ushort v{VB1+c}, v{M}, s[36:39], s65 offen offset:{c*128}","b1")
        a.vmem(f"buffer_load_ushort v{VB1+3}, v{M}, s[36:39], s61 offen","b1")
        a(f"v_lshrrev_b32 v{M}, 2, v0"); a("s_lshl_b32 s65, s3, 4"); a(f"v_add_u32 v{M}, s65, v{M}"); a(f"v_mul_u32_u24 v{M}, {pitch}, v{M}")
        a(f"v_and_b32 v{M+1}, 3, v0"); a(f"v_lshl_add_u32 v{VHG}, v{M+1}, 4, v{M}")
    ts()
    a(f"v_and_b32 v{M}, 31, v0"); a(f"v_bfe_u32 v{M+1}, v0, 1, 3"); a(f"v_lshrrev_b32 v{M+2}, 5, v0"); a(f"v_xor_b32 v{M+1}, v{M+1}, v{M+2}")
    a(f"v_lshlrev_b32 v{M}, 7, v{M}"); a(f"v_lshl_add_u32 v{M}, v{M+1}, 4, v{M}"); a("s_lshl_b32 s65, s60, 12"); a(f"s_add_u32 s65, s65, {XS}"); a(f"v_add_u32 v{VXA}, s65, v{M}")
    for k in range(1,4): a(f"v_xor_b32 v{VXA+k}, {k*32}, v{VXA}")
    a(f"v_lshrrev_b32 v{M}, 5, v0"); a(f"v_lshlrev_b32 v{M}, 3, v{M}"); a(f"v_bfe_u32 v{M+1}, v0, 2, 2"); a(f"v_add_u32 v{M}, v{M}, v{M+1}")
    a(f"v_bfe_u32 v{M+1}, v0, 4, 1"); a(f"v_lshlrev_b32 v{M+1}, 5, v{M+1}"); a(f"v_and_b32 v{M+2}, 3, v0"); a(f"v_lshl_add_u32 v{M+1}, v{M+2}, 3, v{M+1}")
    a(f"v_bfe_u32 v{M+2}, v0, 3, 1"); a(f"v_xor_b32 v{M+2}, s56, v{M+2}"); a(f"v_lshl_add_u32 v{M+2}, v{M+2}, 6, v{M+1}")
    a(f"v_lshl_add_u32 v{VWA}, v{M}, 7, v{M+2}"); a(f"v_add_u32 v{VWA+1}, 0x10000, v{VWA}")
    a("s_lshl_b32 s65, s60, 11"); a(f"v_add_u32 v{VCA}, s65, v{VWA}"); a(f"v_add_u32 v{VCA+1}, s65, v{VWA+1}")
    if typ:
        a(f"v_lshl_add_u32 v{VHA}, v{M}, 6, v{M+1}"); a(f"v_add_u32 v{VHA}, 0x10000, v{VHA}"); a("s_lshl_b32 s65, s60, 10"); a(f"v_add_u32 v{VHC}, s65, v{VHA}")
    a(f"v_and_b32 v{M}, 15, v0"); a(f"v_bfe_u32 v{M+1}, v0, 1, 3"); a(f"v_lshrrev_b32 v{M+2}, 4, v0"); a(f"v_xor_b32 v{M+1}, v{M+1}, v{M+2}")
    a(f"v_lshlrev_b32 v{M}, 7, v{M}"); a(f"v_lshl_add_u32 v{M}, v{M+1}, 4, v{M}"); a("s_lshl_b32 s65, s3, 11"); a(f"s_add_u32 s65, s65, {XS}")
    a(f"v_add_u32 v{VSA}, s65, v{M}"); a(f"v_xor_b32 v{VSA+1}, 64, v{VSA}")
    a(f"v_lshrrev_b32 v{M}, 4, v0"); a(f"v_xor_b32 v{M}, v{M}, v0"); a(f"v_and_b32 v{M}, 1, v{M}")
    a(f"v_cmp_eq_u32 vcc, 0, v{M}"); a(f"v_mov_b32 v{ONE}, 0x3f803f80"); [a(f"v_mov_b32 v{RS+i}, 0x3f803f80") for i in range(4)]
    for i in range(4): a(f"v_cndmask_b32 v{SEL+i}, 0, v{ONE}, vcc")
    a(f"v_lshlrev_b32 v{VST}, 4, v0")
    srd(a,36,24,A2_BYTES,WS_A2)
    a("s_lshl_b32 s68, s58, 2"); a("s_add_u32 s68, s68, s60"); a("s_mul_i32 s68, s68, 147456")
    if typ:
        a("s_lshl_b32 s65, s61, 5"); a("s_add_u32 s69, s68, s65")
        a("s_lshl_b32 s65, s64, 5"); a("s_add_u32 s68, s68, s65"); a("s_lshl_b32 s65, s56, 11"); a("s_add_u32 s68, s68, s65")
    else:
        a("s_lshl_b32 s65, s59, 12"); a("s_add_u32 s68, s68, s65"); a("s_lshl_b32 s65, s56, 11"); a("s_add_u32 s68, s68, s65"); a(f"s_add_u32 s68, s68, {112*1024}")
    def mfma(acc,W,Xr,first,sw):
        c="0" if first else v(acc,16)
        return f"{MF} {v(acc,16)}, {v(Xr,4)}, {v(W,4)}, {c}" if sw else f"{MF} {v(acc,16)}, {v(W,4)}, {v(Xr,4)}, {c}"
    sw=[typ==0,typ==0,False]
    def awf(t,i): return 60+(t&1)*20+i*4
    def areads(t):
        R=[]
        for k in range(4):
            R.append(lambda k=k: a.ds(f"ds_read_b128 {v(X+t*16+k*4,4)}, v{VXA+k} offset:{(t%3)*16384}"))
            for z in range(2): R.append(lambda k=k,z=z: a.ds(f"ds_read_b64_tr_b16 {v(awf(t,k)+2*z,2)}, v{VWA} offset:{t*8192+k*2048+z*512}"))
        for z in range(2): R.append(lambda z=z: a.ds(f"ds_read_b64_tr_b16 {v(awf(t,4)+2*z,2)}, v{VCA} offset:{t*8192+z*512}"))
        for e in range(2): R.append(lambda e=e: a.ds(f"ds_read_b128 {v(T+(t&1)*8+e*4,4)}, v{VSA+e} offset:{(t%3)*16384}"))
        return R
    stream=[]
    for t in range(3,8): stream+=S(t)
    stream+=[dma(1,i) for i in range(4)]+[dma(2,0),dma(2,1)]+[dma(1,i) for i in range(4,8)]+[dma(2,i) for i in range(2,8)]
    a.waitvm(["x0","c0_0"]+(["pf"] if opt.get("touch",0) else [])); a("s_barrier"); ts()
    a.emit(areads(0))
    for t in range(8):
        if t<7: a.waitvm([f"x{t+1}",f"c0_{t+1}"]," lgkmcnt(0)")
        else: a("s_waitcnt lgkmcnt(0)")
        a.allds(); a("s_barrier")
        if t==4: ts()
        main=[[mfma(ACC[0],awf(t,k),X+t*16+k*4,t==0 and k==0,sw[0])] for k in range(4)]
        main.append([f"{M16} {v(VCS,4)}, {v(awf(t,4),4)}, {v(SEL,4)}, {v(VCS,4) if t else 0}"])
        for e in range(2):
            r=v(T+(t&1)*8+e*4,4); z=(t==0 and e==0)
            main.insert(1+3*e,[f"{M16} {v(XE,4)}, {r}, {r}, {0 if z else v(XE,4)}"])
            main.insert(3+3*e,[f"{M16} {v(WE,4)}, {r}, {v(RS,4)}, {0 if z else v(WE,4)}"])
        rd=areads(t+1) if t<7 else []
        a.emit(merge(main, mix(rd, stream[3*t:3*t+3]),0,7))
    def cswrite(par):
        L=[f"v_and_b32 v{M}, 1, v0", f"v_lshlrev_b32 v{M}, 6, v{M}", f"v_lshrrev_b32 v{M+1}, 4, v0", f"v_lshl_add_u32 v{M}, v{M+1}, 4, v{M}",
           "s_lshl_b32 s65, s3, 7", f"s_add_u32 s65, s65, {AUX_CS+par*1024}", f"v_add_u32 v{M}, s65, v{M}", "s_nop 1",
           lambda: a.ds(f"ds_write_b128 v{M}, {v(VCS,4)}")]
        return L
    a(f"v_and_b32 v{M+2}, 15, v0"); a(f"v_lshlrev_b32 v{M+2}, 6, v{M+2}"); a(f"v_lshrrev_b32 v{M+3}, 4, v0"); a(f"v_lshl_add_u32 v{M+2}, v{M+3}, 4, v{M+2}")
    a(f"s_add_u32 s65, s62, {AUX}"); a(f"v_add_u32 v{M+2}, s65, v{M+2}")
    a("s_lshl_b32 s65, s3, 6"); a(f"s_add_u32 s65, s65, {AUX_S}"); a(f"v_lshl_add_u32 v{M+3}, v{M+3}, 4, s65")
    a.ds(f"ds_write_b128 v{M+2}, {v(XE,4)}"); a.ds(f"ds_write_b128 v{M+3}, {v(WE,4)}")
    a.emit(cswrite(0))
    def split(dst,src,t):
        return [f"v_cvt_pk_bf16_f32 v{t}, v{src}, v{src}", f"v_and_b32 v{t}, 0xffff0000, v{t}", f"v_sub_f32 v{t+1}, v{src}, v{t}", f"v_cvt_pk_bf16_f32 v{dst}, v{t}, v{t+1}"]
    RR=T; TT=P if typ==0 else T
    def stats_side():
        E=T
        L=[f"v_and_b32 v{M}, 31, v0", f"v_lshlrev_b32 v{M+1}, 6, v{M}", f"v_and_b32 v{M+3}, 15, v0", f"v_lshl_add_u32 v{M+1}, v{M+3}, 2, v{M+1}",
           "s_lshl_b32 s65, s60, 11", f"s_add_u32 s65, s65, {AUX}", f"v_add_u32 v{M+1}, s65, v{M+1}",
           "s_lshl_b32 s65, s60, 7", f"s_add_u32 s65, s65, {AUX_S}", f"v_lshl_add_u32 v{M+3}, v{M}, 2, s65",
           lambda: a.ds(f"ds_read_b32 v{E+1}, v{M+1}","st"), lambda: a.ds(f"ds_read_b32 v{E}, v{M+3}","st"), lambda: a.waitds(["st"]),
           f"v_mul_f32 v{E}, {f32(-1/512)}, v{E}", f"v_mul_f32 v{E+1}, {f32(1/512)}, v{E+1}",
           f"v_fma_f32 v{E+1}, -v{E}, v{E}, v{E+1}", f"v_max_f32 v{E+1}, 0, v{E+1}", f"v_add_f32 v{E+1}, {f32(1e-5)}, v{E+1}",
           f"v_rsq_f32 v{RS}, v{E+1}", f"v_sqrt_f32 v{SD}, v{E+1}"]
        L+=split(XE,E,E+4)+[f"v_mov_b32 v{XE+1}, v{XE}"]+split(XE+2,SD,E+4)+[f"v_mov_b32 v{XE+3}, 0", f"v_mov_b32 v{WE+3}, 0", f"v_mov_b32 v{WE+2}, 0"]
        if typ:
            L+=[f"v_mul_f32 v{C0}, {f32(K0)}, v{RS}", f"v_mul_f32 v{C1}, v{RS}, v{RS}", f"v_mul_f32 v{C1}, v{C1}, v{RS}", f"v_mul_f32 v{C1}, {f32(K1c)}, v{C1}", lambda: a.waitvm(["b1"])]
        else:
            L+=[f"v_mov_b32 v{C0}, {f32(1e-6)}", f"v_mul_f32 v{C1}, {f32(LOG2E)}, v{RS}",
                "s_lshl_b32 s65, s3, 7", f"s_add_u32 s65, s65, {AUX_R}", f"v_lshl_add_u32 v{M+1}, v{M}, 2, s65",
                lambda: a.ds(f"ds_write_b32 v{M+1}, v{RS}","rw"),
                f"v_lshrrev_b32 v{M+1}, 5, v0", f"v_lshl_add_u32 v{M+1}, v{M+1}, 4, s65", lambda: a.waitds(["rw"])]
            L+=[(lambda q=q: a.ds(f"ds_read_b128 {v(RR+4*q,4)}, v{M+1} offset:{q*32}","rr")) for q in range(4)]
        return L
    def ext_side(par,acc,bi,swp,gsel=True):
        E=TT
        L=[f"v_and_b32 v{M+2}, 31, v0", "s_lshl_b32 s65, s56, 9", f"s_add_u32 s65, s65, {AUX_CS+par*1024}", f"v_lshl_add_u32 v{M+2}, v{M+2}, 2, s65"]
        L+=[(lambda w=w: a.ds(f"ds_read_b32 v{E+w}, v{M+2} offset:{w*128}","cs")) for w in range(4)]
        L+=["v_cmp_gt_u32 vcc, 32, v0", lambda: a.waitds(["cs"]),
            f"v_add_f32 v{E}, v{E}, v{E+1}", f"v_add_f32 v{E+2}, v{E+2}, v{E+3}", f"v_add_f32 v{E}, v{E}, v{E+2}",
            f"v_cvt_pk_bf16_f32 v{WE}, v{E}, v{E}", f"v_and_b32 v{E+1}, 0xffff0000, v{WE}", f"v_sub_f32 v{E+1}, v{E}, v{E+1}", f"v_cvt_pk_bf16_f32 v{WE+1}, v{E+1}, v{E+1}",
            f"v_cndmask_b32 v{WE}, 0, v{WE}, vcc", f"v_cndmask_b32 v{WE+1}, 0, v{WE+1}, vcc"]
        if typ: L+=[f"v_lshl_or_b32 v{WE+2}, v{VB1+bi}, 16, v{VB1+bi}", f"v_cndmask_b32 v{WE+2}, 0, v{WE+2}, vcc"]
        L+=["s_nop 1", mfma(acc,WE,XE,False,swp), "s_nop 7", "s_nop 7"]
        return L
    def skew(stages,n,G,tailf):
        L=[]; ng=n//G
        for sidx in range(ng+len(stages)):
            for j in range(len(stages)-1,-1,-1):
                gi=sidx-j
                if 0<=gi<ng:
                    for e in range(gi*G,gi*G+G):
                        x=stages[j](e)
                        if x: L.append(x)
                    if j==len(stages)-1: L+=tailf(gi*G+G-1)
        return L
    def gelu(acc,soff,off,pk):
        L=[]
        if not pk:
            stg=[lambda i: f"v_mul_f32 v{T+i}, v{acc+i}, v{acc+i}", lambda i: f"v_fma_f32 v{T+i}, v{T+i}, v{C1}, v{C0}", lambda i: f"v_mul_f32 v{T+i}, v{T+i}, v{acc+i}",
                 lambda i: f"v_exp_f32 v{T+i}, v{T+i}", lambda i: f"v_fma_f32 v{T+i}, v{T+i}, v{SD}, v{SD}", lambda i: f"v_rcp_f32 v{T+i}, v{T+i}",
                 lambda i: f"v_mul_f32 v{T+i}, v{T+i}, v{acc+i}", lambda i: (f"v_cvt_pk_bf16_f32 v{P+i//2}, v{T+i-1}, v{T+i}" if i&1 else None)]
            def tl(i):
                if i%8!=7: return []
                hh=i//8
                return [f"s_add_u32 s66, {soff}, {off+hh*1024}", lambda: a.vmem(f"buffer_store_dwordx4 {v(P+hh*4,4)}, v{VST}, s[36:39], s66 offen{st}","st")]
            return skew(stg,16,2,tl)
        for hh in range(2):
            r0=acc+hh*8; Tt=T+hh*8; Pp=P+hh*4
            if pk:
                for i in range(0,8,2): L.append(f"v_pk_mul_f32 {v(Tt+i,2)}, {v(r0+i,2)}, {v(r0+i,2)}")
                for i in range(0,8,2): L.append(f"v_pk_fma_f32 {v(Tt+i,2)}, {v(Tt+i,2)}, {v(C0,2)}, {v(C0,2)} op_sel:[0,1,0] op_sel_hi:[1,1,0]")
                for i in range(0,8,2): L.append(f"v_pk_mul_f32 {v(Tt+i,2)}, {v(Tt+i,2)}, {v(r0+i,2)}")
            else:
                for i in range(8): L.append(f"v_mul_f32 v{Tt+i}, v{r0+i}, v{r0+i}")
                for i in range(8): L.append(f"v_fma_f32 v{Tt+i}, v{Tt+i}, v{C1}, v{C0}")
                for i in range(8): L.append(f"v_mul_f32 v{Tt+i}, v{Tt+i}, v{r0+i}")
            for i in range(8): L.append(f"v_exp_f32 v{Tt+i}, v{Tt+i}")
            if pk:
                for i in range(0,8,2): L.append(f"v_pk_fma_f32 {v(Tt+i,2)}, {v(Tt+i,2)}, {v(RS,2)}, {v(RS,2)} op_sel:[0,1,1] op_sel_hi:[1,1,1]")
            else:
                for i in range(8): L.append(f"v_fma_f32 v{Tt+i}, v{Tt+i}, v{SD}, v{SD}")
            for i in range(8): L.append(f"v_rcp_f32 v{Tt+i}, v{Tt+i}")
            if pk:
                for i in range(0,8,2): L.append(f"v_pk_mul_f32 {v(Tt+i,2)}, {v(Tt+i,2)}, {v(r0+i,2)}")
            else:
                for i in range(8): L.append(f"v_mul_f32 v{Tt+i}, v{Tt+i}, v{r0+i}")
            for i in range(4): L.append(f"v_cvt_pk_bf16_f32 v{Pp+i}, v{Tt+2*i}, v{Tt+2*i+1}")
            L.append(f"s_add_u32 s66, {soff}, {off+hh*1024}")
            L.append(lambda Pp=Pp: a.vmem(f"buffer_store_dwordx4 {v(Pp,4)}, v{VST}, s[36:39], s66 offen{st}","st"))
        return L
    NF=5
    def chunk(acc,wa,ca,kp,swp,side,midwait=None):
        def rd(k):
            return [(lambda z=z: a.ds(f"ds_read_b64_tr_b16 {v(WF+(k%NF)*4+2*z,2)}, v{wa} offset:{k*kp+z*(kp//4)}",f"w{k}")) for z in range(2)]
        def rc(t):
            return [(lambda z=z: a.ds(f"ds_read_b64_tr_b16 {v(CF+2*z,2)}, v{ca} offset:{t*4*kp+z*(kp//4)}",f"cf{t}")) for z in range(2)]
        D=NF-1
        lim = 16 if midwait else 32
        pre=[]
        for k in range(D): pre+=rd(k)
        pre+=rc(0)
        a.emit(pre)
        main=[]; issued=D
        for k in range(32):
            g=[]
            if midwait and k==12:
                g+=[lambda: a.waitvm(midwait), "s_barrier"]; lim=32
            g+=[lambda k=k: a.waitds([f"w{k}"]), mfma(acc,WF+(k%NF)*4,X+k*4,k==0,swp)]
            while issued<min(k+1+D,lim): g+=rd(issued); issued+=1
            if k%4==2:
                t=k//4
                g+=[lambda t=t: a.waitds([f"cf{t}"]), f"{M16} {v(VCS,4)}, {v(CF,4)}, {v(SEL,4)}, {v(VCS,4) if t else 0}"]
            if k%4==3 and k<31: g+=rc(k//4+1)
            main.append(g)
        a.emit(merge(main,side,0,30))
    def boundary(need):
        if need: a.waitvm(need," lgkmcnt(0)")
        else: a("s_waitcnt lgkmcnt(0)")
        a.allds(); a("s_barrier"); ts()
    rest=stream[24:]
    def pfB2():
        srd(a,40,16,1792*1024); srd(a,44,8,512*1024)
        a("s_lshr_b32 s70, s2, 7"); a("s_lshl_b32 s70, s70, 3"); a("s_bfe_u32 s74, s2, 0x30003"); a("s_add_u32 s70, s70, s74"); a("s_lshl_b32 s70, s70, 3"); a("s_add_u32 s70, s70, s3")
        a("s_mul_i32 s74, s70, 14336"); a("s_lshl_b32 s70, s70, 12")
        a(f"v_min_u32 v{VSA}, 55, v0"); a(f"v_lshlrev_b32 v{VSA}, 7, v{VSA}"); a(f"v_and_b32 v{VSA+1}, 31, v0"); a(f"v_lshlrev_b32 v{VSA+1}, 7, v{VSA+1}")
        a.vmem(f"buffer_load_dword v{VXG}, v{VSA}, s[40:43], s74 offen","pf2"); a("s_add_u32 s74, s74, 7168")
        a.vmem(f"buffer_load_dword v{VXG}, v{VSA}, s[40:43], s74 offen","pf2")
        a.vmem(f"buffer_load_dword v{VXG}, v{VSA+1}, s[44:47], s70 offen","pf2")
    if opt.get("pf",1) and typ==0: rest=rest+[pfB2]
    def early(L,D):
        n=len(L)*2//5
        return mix(L[:n],D)+L[n:]
    boundary([f"c1_{i}" for i in range(4)])
    mw=[f"c1_{i}" for i in range(4,8)]
    if typ:
        chunk(ACC[1],VWA+1,VCA+1,2048,False, early(stats_side()+ext_side(0,ACC[0],0,False)+gelu(ACC[0],"s68",0,0), rest), mw)
        a.emit(cswrite(1)); boundary(["c2_7"])
        chunk(ACC[0],VWA,VCA,2048,False, early(ext_side(1,ACC[1],1,False)+gelu(ACC[1],"s68",4096,0), [dma("H",i) for i in range(4)]))
        a.emit(cswrite(0)); boundary(["H3"])
        a("s_cmp_lg_u32 s56, 0"); a("s_cbranch_scc1 .Lp1_Bg1")
        sv=(list(a.dq),a.dsdone)
        chunk(ACC[1],VHA,VHC,1024,False, ext_side(0,ACC[0],2,False)+gelu(ACC[0],"s68",8192,0))
        a.emit(cswrite(1)); boundary(None)
        a.emit(ext_side(1,ACC[1],3,False)+gelu(ACC[1],"s69",0,1))
        ts(); ts.flush(M); n=ts.n
        a("s_endpgm")
        a.label(".Lp1_Bg1"); a.dq,a.dsdone=sv; ts.reset(n-2)
        p1_tail(a,opt)
        a.emit(ext_side(0,ACC[0],2,False)+gelu(ACC[0],"s68",8192,0))
        a("s_barrier"); ts(); ts(); ts.flush(M)
        a("s_endpgm")
    else:
        EPS,L2=C0,C1; PK=[40,M]
        def phi(acc,perreg,dst,store):
            L=[]
            for hh in range(2):
                r0=acc+hh*8
                if perreg:
                    L+=[f"v_fma_f32 v{r0+i}, v{r0+i}, v{RR+hh*8+i}, v{EPS}" for i in range(8)]
                    L+=[f"v_mul_f32 v{TT+i}, {f32(LOG2E)}, v{r0+i}" for i in range(8)]
                else:
                    L+=[f"v_mul_f32 v{TT+i}, v{L2}, v{r0+i}" for i in range(8)]
                    L+=[f"v_fma_f32 v{r0+i}, v{r0+i}, v{RS}, v{EPS}" for i in range(8)]
                L+=[f"v_exp_f32 v{TT+i}, v{TT+i} clamp" for i in range(8)]
                L+=[f"v_max_f32 v{r0+i}, v{r0+i}, v{EPS}" for i in range(8)]
                L+=[f"v_add_f32 v{r0+i}, v{r0+i}, v{TT+i}" for i in range(8)]
                L+=[f"v_cvt_pk_bf16_f32 v{dst[hh]+i}, v{r0+2*i}, v{r0+2*i+1}" for i in range(4)]
                if store: L.append(f"buffer_store_dwordx4 {v(dst[hh],4)}, v{VST}, s[36:39], s68 offen offset:{hh*1024}{st}")
            return L
        PK=[40,4]
        chunk(ACC[1],VWA+1,VCA+1,2048,True, early(stats_side()+ext_side(0,ACC[0],0,True)+[lambda: a.waitds(["rr"])]+phi(ACC[0],True,PK,False), rest), mw)
        a.emit(cswrite(1)); boundary(["c2_7"])
        VA,VB=RR,RR+8
        vs=[f"v_mul_f32 v{ACC[1]+i}, v{ACC[1]+i}, v{RR+i}" for i in range(16)]+[f"v_cvt_pk_bf16_f32 v{TT+i}, v{ACC[1]+2*i}, v{ACC[1]+2*i+1}" for i in range(8)]
        vs+=[f"v_and_b32 v{M}, 16, v0", f"v_cmp_eq_u32 s[66:67], 0, v{M}", "s_nop 1"]
        for i in range(8): vs+=[f"v_cndmask_b32 v{VA+i}, v{ONE}, v{TT+i}, s[66:67]", f"v_cndmask_b32 v{VB+i}, v{TT+i}, v{ONE}, s[66:67]"]
        chunk(ACC[0],VWA,VCA,2048,False, ext_side(1,ACC[1],1,True)+vs)
        DA,DB=ACC[1],X
        a(f"{MF} {v(DA,16)}, {v(PK[0],4)}, {v(VA,4)}, 0"); a(f"{MF} {v(DB,16)}, {v(PK[0],4)}, {v(VB,4)}, 0")
        a(f"{MF} {v(DA,16)}, {v(PK[1],4)}, {v(VA+4,4)}, {v(DA,16)}"); a(f"{MF} {v(DB,16)}, {v(PK[1],4)}, {v(VB+4,4)}, {v(DB,16)}")
        a.emit(cswrite(0))
        a("s_lshl_b32 s65, s3, 12"); a(f"s_add_u32 s65, s65, 0x10000"); a(f"v_add_u32 v{M+1}, s65, v{VST}"); a("s_nop 7"); a("s_nop 7")
        for q in range(4): a.ds(f"ds_write_b128 v{M+1}, {v((DA if q<2 else DB)+q*4,4)} offset:{q*1024}")
        boundary(None)
        a("s_lshl_b32 s65, s60, 10"); a("s_lshl_b32 s66, s56, 14"); a("s_add_u32 s65, s65, s66"); a(f"s_add_u32 s65, s65, 0x10000"); a(f"v_add_u32 v{M+1}, s65, v{VST}")
        KV=X+32
        for w in range(4): a.ds(f"ds_read_b128 {v(KV+w*4,4)}, v{M+1} offset:{w*4096}","kv")
        a.emit(ext_side(0,ACC[0],2,False)[:-2])
        srd(a,40,24,KVP_BYTES,WS_KVP)
        a("s_lshl_b32 s65, s59, 2"); a("s_lshr_b32 s67, s60, 1"); a("s_add_u32 s65, s65, s67"); a("s_lshl_b32 s67, s56, 1"); a("s_add_u32 s65, s65, s67"); a("s_lshl_b32 s65, s65, 15")
        a("s_lshl_b32 s67, s58, 11"); a("s_add_u32 s65, s65, s67"); a("s_and_b32 s67, s60, 1"); a("s_lshl_b32 s67, s67, 10"); a("s_add_u32 s65, s65, s67")
        a.waitds(["kv"])
        for i in range(4): a(f"v_add_f32 v{KV+i}, v{KV+i}, v{KV+4+i}"); a(f"v_add_f32 v{KV+8+i}, v{KV+8+i}, v{KV+12+i}")
        for i in range(4): a(f"v_add_f32 v{KV+i}, v{KV+i}, v{KV+8+i}")
        a(f"buffer_store_dwordx4 {v(KV,4)}, v{VST}, s[40:43], s65 offen{st}")
        a.emit(phi(ACC[0],False,[X+64,X+68],True))
        a("s_cmp_eq_u32 s56, 0"); a("s_cbranch_scc1 .Lp1_Aend")
        p1_tail(a,opt)
        a.label(".Lp1_Aend")
        ts(); ts(); ts.flush(M)
        a("s_endpgm")
def p1_tail(a,opt):
    srd(a,44,24,KVZ_BYTES,WS_KVZ)
    a("s_lshl_b32 s65, s2, 2"); a("s_add_u32 s65, s65, s60"); a("s_lshl_b32 s65, s65, 5"); a(f"v_lshlrev_b32 v{M+1}, 2, v0"); a(f"v_mov_b32 v{M+2}, -1")
    a("s_mov_b64 exec, 0xff")
    a(f"buffer_store_dword v{M+2}, v{M+1}, s[44:47], s65 offen")
    a("s_mov_b64 exec, -1")
def gen_p1(name,opt):
    a=A(); a.raw(khead(name))
    a("s_cmp_ge_u32 s2, 256"); a("s_cbranch_scc1 .Lp1_end")
    ts=TS(a,opt.get("ts",0),0); ts.start()
    load_args(a)
    a("v_lshrrev_b32 v1, 6, v0"); a("v_and_b32 v0, 63, v0"); a("v_readfirstlane_b32 s3, v1")
    a("s_and_b32 s56, s2, 7"); a("s_lshr_b32 s57, s2, 3")
    a("s_and_b32 s58, s56, 1"); a("s_lshl_b32 s58, s58, 3"); a("s_and_b32 s59, s57, 7"); a("s_add_u32 s58, s58, s59")
    a("s_lshr_b32 s56, s56, 1"); a("s_lshl_b32 s56, s56, 2"); a("s_lshr_b32 s57, s57, 3"); a("s_add_u32 s56, s56, s57")
    a("s_and_b32 s57, s56, 1"); a("s_lshr_b32 s59, s56, 1")
    if opt.get("rot",1):
        a("s_add_u32 s71, s56, s58"); a("s_and_b32 s71, s71, 1"); a("s_bfe_u32 s72, s58, 0x20001")
    else: a("s_mov_b32 s71, 0"); a("s_mov_b32 s72, 0")
    a("s_and_b32 s60, s3, 3"); a("s_lshr_b32 s56, s3, 2"); a("s_lshl_b32 s62, s3, 10"); a("s_lshl_b32 s63, s58, 17")
    a(f"v_lshrrev_b32 v{M}, 3, v0"); a("s_lshl_b32 s64, s3, 3"); a(f"v_add_u32 v{M}, s64, v{M}")
    a(f"v_bfe_u32 v{M+1}, v{M}, 1, 3"); a(f"v_and_b32 v{M+2}, 7, v0"); a(f"v_xor_b32 v{M+1}, v{M+1}, v{M+2}")
    a(f"v_lshlrev_b32 v{M}, 10, v{M}"); a(f"v_lshl_add_u32 v{VXG}, v{M+1}, 4, v{M}")
    a("s_waitcnt lgkmcnt(0)")
    srd(a,28,4,2048*1024)
    a("s_cmp_eq_u32 s57, 1"); a("s_cbranch_scc1 .Lp1_B")
    gen_type(a,0,opt,ts); gen_type(a,1,opt,ts)
    a.label(".Lp1_end"); a("s_endpgm")
    return a.text()+kdesc(name,256)
```
